```python
import torch

def _softmax(x, axis=-1):
    return torch.softmax(x, dim=axis)
def _gelu(x):
    return torch.nn.functional.gelu(x, approximate="tanh")
def _silu(x):
    return torch.nn.functional.silu(x)
def _sigmoid(x):
    return torch.sigmoid(x)
def _layernorm(x, axis=-1, eps=1e-5):
    m = x.mean(dim=axis, keepdim=True)
    v = x.var(dim=axis, keepdim=True, unbiased=False)
    return (x - m) / torch.sqrt(v + eps)
def _scatter_add(tgt, idx, src, axis=0):
    return tgt.clone().index_add_(axis, idx, src)
def _segment_sum(src, seg, n):
    out = torch.zeros((n,) + src.shape[1:], dtype=src.dtype)
    return out.index_add_(0, seg, src)
def _pad(x, pw):
    flat = tuple(v for pair in reversed(pw) for v in pair)
    return torch.nn.functional.pad(x, flat)

kernel_name = 'standalone__mha_block_cached__near_ridge'

def setup_inputs():

    _w = (lambda a: (lambda t: t.to(torch.bfloat16) if t.is_floating_point() else t)(torch.as_tensor(a)))
    B, Sq, D = 16, 144, 576
    H, Sk, Dh = 32, 1024, 128
    return {
        "x": _w((lambda *s: torch.randn(*s, dtype=torch.bfloat16) * 0.8)(B, Sq, D)),
        "k_cache": _w((lambda *s: torch.randn(*s, dtype=torch.bfloat16) * 0.8)(B, H, Sk, Dh)),
        "v_cache": _w((lambda *s: torch.randn(*s, dtype=torch.bfloat16) * 0.05)(B, H, Sk, Dh)),
        "wq": _w((lambda *s: torch.randn(*s, dtype=torch.bfloat16) * 0.8)(D, H * Dh) * (D ** -0.5)),
        "wo": _w((lambda *s: torch.randn(*s, dtype=torch.bfloat16) * 0.05)(H * Dh, D) * ((H * Dh) ** -0.5)),
    }

def reference(x, k_cache, v_cache, wq, wo):
    B, Sq, D = x.shape
    H, Dh = 32, 128
    q = (lambda x, *d: x.permute(*d))((x @ wq).reshape(B, Sq, H, Dh), 0, 2, 1, 3)
    scores = torch.einsum("bhqd,bhkd->bhqk", q, k_cache) * (Dh ** -0.5)
    p = _softmax(scores, axis=-1)
    o = torch.einsum("bhqk,bhkd->bhqd", p, v_cache)
    return (lambda x, *d: x.permute(*d))(o, 0, 2, 1, 3).reshape(B, Sq, H * Dh) @ wo
```

```python
import re

def vr(base, n=1):
    return f'v{base}' if n == 1 else f'v[{base}:{base+n-1}]'
def sr(base, n=1):
    return f's{base}' if n == 1 else f's[{base}:{base+n-1}]'
def vset(base, n=1):
    return {('v', base + i) for i in range(n)}
def sset(base, n=1):
    return {('s', base + i) for i in range(n)}

_reg_re = re.compile(r'\b([vs])(\d+)\b|\b([vs])\[(\d+):(\d+)\]|\b(vcc|exec|m0|scc)\b')
def regs_of(txt):
    out = set()
    for m in _reg_re.finditer(txt):
        if m.group(1): out.add((m.group(1), int(m.group(2))))
        elif m.group(3):
            for i in range(int(m.group(4)), int(m.group(5)) + 1): out.add((m.group(3), i))
        else: out.add((m.group(6), 0))
    return out

TRANS = ('v_exp_f32', 'v_log_f32', 'v_rcp_f32', 'v_rsq_f32', 'v_sqrt_f32')

class Ins:
    __slots__ = ('text', 'kind', 'rd', 'wr', 'srcc', 'states', 'label')
    def __init__(s, text, kind, rd=(), wr=(), srcc=(), states=1):
        s.text = text; s.kind = kind; s.rd = set(rd); s.wr = set(wr); s.srcc = set(srcc); s.states = states

class Asm:
    def __init__(s):
        s.out = []
        s.lq = []
        s.auto_nop = True
        s.nnop = 0
    def raw(s, text):
        s.out.append(Ins(text, 'raw', states=0))
    def label(s, name):
        s.out.append(Ins(name + ':', 'label', states=0))
    def comment(s, t):
        s.out.append(Ins('; ' + t, 'raw', states=0))
    def _need(s, ins):
        need = 0
        dist = 0
        for p in reversed(s.out):
            if dist >= 20: break
            if p.kind in ('raw', 'label'):
                continue
            req = 0
            if p.kind == 'mfma':
                if ins.kind == 'mfma':
                    if p.wr & ins.srcc:
                        req = max(req, 0 if p.wr == ins.srcc else 6)
                    if p.wr & (ins.rd - ins.srcc): req = max(req, 8)
                    if (p.wr & ins.wr) and p.wr != ins.srcc: req = max(req, 8)
                elif ins.kind in ('valu', 'trans', 'perm', 'ds', 'vmem', 'rfl'):
                    if p.wr & (ins.rd | ins.wr): req = max(req, 8)
                    if ins.kind in ('valu', 'trans', 'perm') and (p.srcc & ins.wr): req = max(req, 3)
            if p.kind in ('valu', 'trans', 'perm', 'rfl'):
                vw = {r for r in p.wr if r[0] == 'v'}
                sw = {r for r in p.wr if r[0] in ('s', 'vcc')}
                if ins.kind == 'mfma' and (vw & ins.rd): req = max(req, 2)
                if ins.kind == 'perm' and (vw & ins.rd): req = max(req, 2)
                if ins.kind == 'rfl' and (vw & ins.rd): req = max(req, 1)
                if p.kind == 'trans' and ins.kind in ('valu', 'perm', 'rfl', 'mfma') and (vw & ins.rd): req = max(req, 1)
                if ins.kind in ('valu', 'trans', 'perm', 'rfl', 'mfma') and (sw & ins.rd): req = max(req, 2)
                if ins.kind == 'vmem' and (sw & ins.rd): req = max(req, 5)
                if ins.kind == 'salu' and (sw & ins.rd): req = max(req, 1)
            if p.kind == 'salu' and ('m0', 0) in p.wr and ins.kind == 'vmem' and ('m0', 0) in ins.rd: req = max(req, 1)
            if p.kind == 'vmem' and 'store' in p.text and ('x4' in p.text or 'x3' in p.text):
                data = regs_of(p.text.split(',')[0])
                if data & ins.wr: req = max(req, 2)
            need = max(need, req - dist)
            dist += p.states
        return need
    def _lgkm(s, ins):
        touched = ins.rd | ins.wr
        idx = -1
        for i, d in enumerate(s.lq):
            if d & touched: idx = i
        if idx >= 0:
            n = len(s.lq) - 1 - idx
            n = min(n, 15)
            s.out.append(Ins(f's_waitcnt lgkmcnt({n})', 'wait'))
            s.lq = s.lq[len(s.lq) - n:] if n else []
    def emit(s, ins):
        s._lgkm(ins)
        need = s._need(ins)
        if need > 0:
            assert s.auto_nop
            s.nnop += need
            while need > 0:
                k = min(need, 16)
                s.out.append(Ins(f's_nop {k-1}', 'nop', states=k))
                need -= k
        s.out.append(ins)
    def valu(s, text, extra_rd=(), extra_wr=()):
        op, rest = text.split(None, 1)
        parts = [p.strip() for p in rest.split(',')]
        wr = regs_of(parts[0]); rd = set()
        k = 1
        if op.startswith(('v_add_co', 'v_sub_co', 'v_addc_co')):
            wr |= regs_of(parts[1]); k = 2
        for p in parts[k:]: rd |= regs_of(p)
        if op.startswith(('v_fmac', 'v_mac')): rd |= regs_of(parts[0])
        kind = 'valu'
        if op.startswith(TRANS): kind = 'trans'
        if op.startswith('v_permlane'):
            kind = 'perm'; rd |= regs_of(parts[0]); wr |= regs_of(parts[1])
        if op.startswith(('v_readfirstlane', 'v_readlane')): kind = 'rfl'
        s.emit(Ins(text, kind, rd | set(extra_rd), wr | set(extra_wr)))
    def salu(s, text):
        op, *rest = text.split(None, 1)
        rd = set(); wr = set()
        if rest:
            parts = [p.strip() for p in rest[0].split(',')]
            if op.startswith(('s_cmp', 's_bitcmp')):
                for p in parts: rd |= regs_of(p)
            else:
                wr = regs_of(parts[0])
                for p in parts[1:]: rd |= regs_of(p)
        s.emit(Ins(text, 'salu', rd, wr))
    def ctl(s, text):
        rd = set()
        if 'vcc' in text: rd.add(('vcc', 0))
        st = 1
        m = re.match(r's_nop (\d+)', text)
        if m: st = int(m.group(1)) + 1
        s.out.append(Ins(text, 'ctl', rd, states=st))
    def mfma(s, d, a, b, c):
        ctext = '0' if c is None else vr(c, 4)
        srcc = set() if c is None else vset(c, 4)
        s.emit(Ins(f'v_mfma_f32_16x16x32_bf16 {vr(d,4)}, {vr(a,4)}, {vr(b,4)}, {ctext}', 'mfma',
                   vset(a, 4) | vset(b, 4) | srcc, vset(d, 4), srcc))
    def ds_read(s, op, d, n, addr, off=0):
        assert 0 <= off < 65536, off
        s.emit(Ins(f'{op} {vr(d,n)}, v{addr} offset:{off}', 'ds', vset(addr), vset(d, n)))
        s.lq.append(vset(d, n))
    def ds_write(s, op, addr, src, n, off=0):
        assert 0 <= off < 65536, off
        s.emit(Ins(f'{op} v{addr}, {vr(src,n)} offset:{off}', 'ds', vset(addr) | vset(src, n), set()))
        s.lq.append({('store', len(s.out))})
    def vmem(s, text, rd=(), wr=()):
        op, rest = text.split(None, 1)
        r = regs_of(rest)
        w = set()
        if 'load' in op and ' lds' not in text:
            w = regs_of(rest.split(',')[0]); r = regs_of(','.join(rest.split(',')[1:]))
        if ' lds' in text: r.add(('m0', 0))
        s.emit(Ins(text, 'vmem', r | set(rd), w | set(wr)))
    def wait(s, vm=None, lgkm=None):
        t = 's_waitcnt'
        if vm is not None:
            assert 0 <= vm <= 63
            t += f' vmcnt({vm})'
        if lgkm is not None:
            t += f' lgkmcnt({lgkm})'
            s.lq = s.lq[len(s.lq) - lgkm:] if lgkm else []
        s.out.append(Ins(t, 'wait'))
    def text(s):
        return '\n'.join(('' if i.kind in ('label',) else '  ') + i.text for i in s.out) + '\n'

def interleave(main, fill, pattern=None):
    res = []
    n, m = len(main), len(fill)
    k = 0
    for i, f in enumerate(main):
        res.append(f)
        tgt = (i + 1) * m // n if n else m
        while k < tgt:
            res.append(fill[k]); k += 1
    res += fill[k:]
    return res

def kd(name, vgpr, sgpr=102):
    acc = (vgpr + 3) // 4 * 4
    return f'''.section .rodata,"a"
.p2align 6
.amdhsa_kernel {name}
  .amdhsa_next_free_vgpr {vgpr}
  .amdhsa_next_free_sgpr {sgpr}
  .amdhsa_accum_offset {acc}
  .amdhsa_group_segment_fixed_size 0
  .amdhsa_kernarg_size 64
  .amdhsa_user_sgpr_count 2
  .amdhsa_user_sgpr_kernarg_segment_ptr 1
  .amdhsa_system_sgpr_workgroup_id_x 1
.end_amdhsa_kernel
'''
```

```python
import sys, math
from asmlib import *

NS = 6
QBUF = 51200
Q9X = 153600
CSCALE = math.log2(math.e) / math.sqrt(128.0)
import struct
def f2u(x): return struct.unpack('<I', struct.pack('<f', x))[0]

S_X, S_WQ, S_K, S_V, S_O = 20, 24, 28, 32, 36
S_RET = 40
S_W, S_W4, S_G, S_STEP, S_GOFS, S_T, S_FLOOR, S_END = 42, 43, 44, 45, 46, 47, 48, 49
S_M, S_T0, S_T1, S_T2, S_B, S_H, S_WQM, S_XM, S_C = 50, 51, 52, 53, 54, 55, 56, 57, 58
V_O = [8, 40, 72]
V_L = [80, 84, 88]
V_NM = [92, 96, 100]
V_ONES = 104
V_Q = [108, 124, 140]
V_KV = 156
V_S = [188, 196, 204]
V_AK = 212
V_AV = 216
V_DK, V_DV = 224, 225
V_T = 226
NV1 = 248

def k1(a, kv_flags=' nt', w_flags='', o_flags=''):
    name = 'attn_kernel'
    a.raw(f'.globl {name}\n.p2align 8\n.type {name},@function\n{name}:')
    a.salu('s_cmp_ge_u32 s2, 256')
    a.ctl('s_cbranch_scc1 L_k1_end')
    a.raw('  s_load_dwordx16 s[4:19], s[0:1], 0')
    a.valu('v_lshrrev_b32 v1, 6, v0')
    a.valu('v_and_b32 v0, 63, v0')
    a.valu(f'v_readfirstlane_b32 s{S_W}, v1')
    a.salu(f's_and_b32 s{S_W4}, s{S_W}, 3')
    a.salu(f's_lshr_b32 s{S_G}, s{S_W}, 2')
    a.salu(f's_and_b32 s{S_T0}, s2, 1')
    a.salu(f's_lshl_b32 s{S_T0}, s{S_T0}, 3')
    a.salu(f's_bfe_u32 s{S_T1}, s2, 0x30003')
    a.salu(f's_add_u32 s{S_B}, s{S_T0}, s{S_T1}')
    a.salu(f's_bfe_u32 s{S_T0}, s2, 0x20001')
    a.salu(f's_lshl_b32 s{S_T0}, s{S_T0}, 2')
    a.salu(f's_lshr_b32 s{S_T1}, s2, 6')
    a.salu(f's_add_u32 s{S_T0}, s{S_T0}, s{S_T1}')
    a.salu(f's_lshl_b32 s{S_T2}, s{S_T0}, 1')
    a.salu(f's_add_u32 s{S_H}, s{S_T2}, s{S_G}')
    a.valu('v_and_b32 v2, 15, v0')
    a.valu('v_lshrrev_b32 v3, 4, v0')
    a.raw('  s_waitcnt lgkmcnt(0)')
    a.salu(f's_mul_i32 s{S_T0}, s{S_B}, 165888')
    a.salu(f's_add_u32 s{S_X}, s4, s{S_T0}')
    a.salu(f's_addc_u32 s{S_X+1}, s5, 0')
    a.salu(f's_mov_b32 s{S_X+2}, 165888')
    a.salu(f's_mov_b32 s{S_X+3}, 0x20000')
    a.salu(f's_lshl_b32 s{S_T0}, s{S_H}, 8')
    a.salu(f's_add_u32 s{S_WQ}, s10, s{S_T0}')
    a.salu(f's_addc_u32 s{S_WQ+1}, s11, 0')
    a.salu(f's_sub_u32 s{S_WQ+2}, {576*8192}, s{S_T0}')
    a.salu(f's_mov_b32 s{S_WQ+3}, 0x20000')
    a.salu(f's_lshl_b32 s{S_T0}, s{S_B}, 5')
    a.salu(f's_add_u32 s{S_T0}, s{S_T0}, s{S_T2}')
    a.salu(f's_lshr_b32 s{S_T1}, s{S_T0}, 14')
    a.salu(f's_lshl_b32 s{S_T0}, s{S_T0}, 18')
    a.salu(f's_add_u32 s{S_K}, s6, s{S_T0}')
    a.salu(f's_addc_u32 s{S_K+1}, s7, s{S_T1}')
    a.salu(f's_mov_b32 s{S_K+2}, 524288')
    a.salu(f's_mov_b32 s{S_K+3}, 0x20000')
    a.salu(f's_add_u32 s{S_V}, s8, s{S_T0}')
    a.salu(f's_addc_u32 s{S_V+1}, s9, s{S_T1}')
    a.salu(f's_mov_b32 s{S_V+2}, 524288')
    a.salu(f's_mov_b32 s{S_V+3}, 0x20000')
    a.salu(f's_mul_i32 s{S_T0}, s{S_B}, {9*131072}')
    a.salu(f's_lshl_b32 s{S_T1}, s{S_H}, 12')
    a.salu(f's_add_u32 s{S_T0}, s{S_T0}, s{S_T1}')
    a.salu(f's_add_u32 s{S_O}, s18, s{S_T0}')
    a.salu(f's_addc_u32 s{S_O+1}, s19, 0')
    a.salu(f's_sub_u32 s{S_O+2}, {9*131072}, s{S_T1}')
    a.salu(f's_mov_b32 s{S_O+3}, 0x20000')

    VW0, VW1, VX0, VX1, VX9 = 238, 239, 240, 241, 242
    T = V_T
    a.valu(f'v_lshlrev_b32 v{T}, 1, v3')
    a.valu(f'v_xor_b32 v{T}, v{T}, v2')
    a.valu(f'v_lshlrev_b32 v{T}, 4, v{T}')
    a.valu(f'v_lshl_add_u32 v{VW0}, v3, 13, v{T}')
    a.valu(f'v_xor_b32 v{VW1}, 128, v{VW0}')
    a.valu(f'v_lshrrev_b32 v{T}, 3, v0')
    a.valu(f'v_mul_u32_u24 v{T}, 1152, v{T}')
    a.valu(f'v_and_b32 v{T+1}, 7, v0')
    a.valu(f'v_xor_b32 v{T+1}, v{T+1}, v3')
    a.valu(f'v_lshl_add_u32 v{VX0}, v{T+1}, 4, v{T}')
    a.valu(f'v_xor_b32 v{T+1}, 4, v{T+1}')
    a.valu(f'v_lshl_add_u32 v{VX1}, v{T+1}, 4, v{T}')
    a.valu(f'v_lshrrev_b32 v{T}, 5, v0')
    a.salu(f's_lshl_b32 s{S_T0}, s{S_W}, 1')
    a.salu(f's_add_u32 s{S_T0}, s{S_T0}, 128')
    a.valu(f'v_add_u32 v{T}, s{S_T0}, v{T}')
    a.valu(f'v_mul_u32_u24 v{T}, 1152, v{T}')
    a.valu(f'v_bfe_u32 v{T+1}, v0, 2, 3')
    a.valu(f'v_xor_b32 v{T+1}, s{S_W}, v{T+1}')
    a.valu(f'v_lshl_add_u32 v{T}, v{T+1}, 4, v{T}')
    a.valu(f'v_and_b32 v{T+1}, 3, v0')
    a.valu(f'v_lshl_add_u32 v{VX9}, v{T+1}, 2, v{T}')
    a.salu(f's_lshl_b32 s{S_WQM}, s{S_G}, 14')
    a.salu(f's_lshl_b32 s{S_T0}, s{S_W4}, 12')
    a.salu(f's_add_u32 s{S_WQM}, s{S_WQM}, s{S_T0}')
    a.salu(f's_add_u32 s{S_WQM}, s{S_WQM}, 18432')
    a.salu(f's_lshl_b32 s{S_XM}, s{S_W}, 11')
    S_WQS, S_XS, S_X9M = 59, 60, 61
    a.salu(f's_lshl_b32 s{S_WQS}, s{S_W4}, 17')
    a.salu(f's_mul_i32 s{S_XS}, s{S_W}, {16*1152}')
    a.salu(f's_lshl_b32 s{S_X9M}, s{S_W}, 8')

    def qp_issue(n):
        buf = (n % 3) * QBUF
        for jj in range(4):
            a.salu(f's_add_u32 m0, s{S_WQM}, {buf + jj*1024}')
            a.salu(f's_add_u32 s{S_T0}, s{S_WQS}, {(n*64 + jj*4)*8192}')
            a.vmem(f'buffer_load_dwordx4 v{VW0 if jj < 2 else VW1}, s[{S_WQ}:{S_WQ+3}], s{S_T0} offen{w_flags} lds')
        for jj in range(2):
            a.salu(f's_add_u32 m0, s{S_XM}, {buf + jj*1024}')
            a.salu(f's_add_u32 s{S_T0}, s{S_XS}, {jj*8*1152 + n*128}')
            a.vmem(f'buffer_load_dwordx4 v{VX0 if jj == 0 else VX1}, s[{S_X}:{S_X+3}], s{S_T0} offen{w_flags} lds')
        a.salu(f's_add_u32 m0, s{S_X9M}, {buf + 16384}')
        a.salu(f's_mov_b32 s{S_T0}, {n*128}')
        a.vmem(f'buffer_load_dword v{VX9}, s[{S_X}:{S_X+3}], s{S_T0} offen{w_flags} lds')
    for n in range(3): qp_issue(n)

    a.salu(f's_lshl_b32 s{S_T0}, s{S_W4}, 2')
    a.valu(f'v_add_u32 v{T}, s{S_T0}, v3')
    a.valu(f'v_xor_b32 v{T+1}, v{T}, v2')
    a.valu(f'v_lshlrev_b32 v{T+1}, 4, v{T+1}')
    a.valu(f'v_lshl_add_u32 v{V_DK}, v{T}, 8, v{T+1}')
    a.valu(f'v_and_b32 v{T+1}, 7, v{T}')
    a.valu(f'v_lshlrev_b32 v{T+1}, 1, v{T+1}')
    a.valu(f'v_xor_b32 v{T+1}, v{T+1}, v2')
    a.valu(f'v_lshlrev_b32 v{T+1}, 4, v{T+1}')
    a.valu(f'v_lshl_add_u32 v{V_DV}, v{T}, 8, v{T+1}')
    a.salu(f's_lshl_b32 s{S_M}, s{S_W4}, 10')
    a.salu(f's_mov_b32 s{S_GOFS}, 0')

    def kv_issue_list(slot):
        L = []
        def mk(off, srd, vreg, hi):
            def f():
                a.salu(f's_add_u32 m0, s{S_M}, {slot*16384 + off}')
                if hi:
                    a.salu(f's_add_u32 s{S_T0}, s{S_GOFS}, 4096')
                    so = S_T0
                else:
                    so = S_GOFS
                a.vmem(f'buffer_load_dwordx4 v{vreg}, s[{srd}:{srd+3}], s{so} offen{kv_flags} lds')
            return f
        L.append(mk(0, S_K, V_DK, False)); L.append(mk(4096, S_K, V_DK, True))
        L.append(mk(8192, S_V, V_DV, False)); L.append(mk(12288, S_V, V_DV, True))
        L.append(lambda: a.salu(f's_add_u32 s{S_GOFS}, s{S_GOFS}, 8192'))
        return L

    VXA = [226+4, 226+5]
    VXN = [226+6, 226+7]
    VWA = V_AV
    a.valu(f'v_lshrrev_b32 v{T}, 1, v2')
    a.valu(f'v_xor_b32 v{T}, v{T}, v3')
    a.valu(f'v_lshlrev_b32 v{T}, 4, v{T}')
    a.valu(f'v_lshl_add_u32 v{T}, v2, 7, v{T}')
    a.salu(f's_lshl_b32 s{S_T0}, s{S_W4}, 12')
    a.valu(f'v_add_u32 v{VXA[0]}, s{S_T0}, v{T}')
    a.valu(f'v_xor_b32 v{VXA[1]}, 64, v{VXA[0]}')
    a.valu(f'v_add_u32 v{VXN[0]}, 16384, v{T}')
    a.valu(f'v_xor_b32 v{VXN[1]}, 64, v{VXN[0]}')
    a.valu(f'v_lshrrev_b32 v{T}, 2, v2')
    a.valu(f'v_lshl_add_u32 v{T+1}, v3, 3, v{T}')
    a.valu(f'v_lshlrev_b32 v{T+1}, 8, v{T+1}')
    a.valu(f'v_and_b32 v{T+2}, 3, v0')
    a.valu(f'v_lshl_add_u32 v{T+1}, v{T+2}, 3, v{T+1}')
    a.salu(f's_lshl_b32 s{S_T0}, s{S_G}, 14')
    a.salu(f's_add_u32 s{S_T0}, s{S_T0}, 18432')
    a.valu(f'v_add_u32 v{T+1}, s{S_T0}, v{T+1}')
    a.valu(f'v_and_b32 v{T+2}, 1, v3')
    a.valu(f'v_lshl_add_u32 v{T}, v{T+2}, 2, v{T}')
    for tau in range(8):
        a.salu(f's_lshl_b32 s{S_T0}, s{S_W4}, 1')
        a.salu(f's_add_u32 s{S_T0}, s{S_T0}, {tau}')
        a.salu(f's_and_b32 s{S_T0}, s{S_T0}, 7')
        a.valu(f'v_xor_b32 v{T+2}, s{S_T0}, v{T}')
        a.valu(f'v_lshl_add_u32 v{VWA+tau}, v{T+2}, 5, v{T+1}')
    for r in range(8, 80): a.valu(f'v_mov_b32 v{r}, 0')

    WF = [156, 108]
    XF = [188, 200]
    def qp_reads(sp):
        L = []
        wf, xf = WF[sp], XF[sp]
        L.append(lambda: a.ds_read('ds_read_b128', xf, 4, VXA[sp], 0))
        for tau in range(8):
            for rd in range(2):
                L.append(lambda tau=tau, rd=rd: a.ds_read('ds_read_b64_tr_b16', wf + 4*tau + 2*rd, 2, VWA+tau, sp*8192 + rd*1024))
            if tau == 0:
                L.append(lambda: a.ds_read('ds_read_b128', xf+4, 4, VXA[sp], 2048))
                L.append(lambda: a.ds_read('ds_read_b128', xf+8, 4, VXN[sp], 0))
        return L
    def qp_mfmas(sp):
        L = []
        wf, xf = WF[sp], XF[sp]
        for tau in range(8):
            L.append(lambda tau=tau: a.mfma(V_O[0]+4*tau, wf+4*tau, xf, V_O[0]+4*tau))
            L.append(lambda tau=tau: a.mfma(V_O[1]+4*tau, wf+4*tau, xf+4, V_O[1]+4*tau))
            if tau < 2:
                L.append(lambda tau=tau: a.mfma(V_O[2]+4*tau, wf+4*tau, xf+8, V_O[2]+4*tau))
        return L
    for n in range(9):
        a.comment(f'---- qproj chunk {n}')
        if n == 8:
            a.salu(f's_cmp_eq_u32 s{S_G}, 0')
            a.ctl('s_cbranch_scc1 L_qp8x')
            a.wait(vm=0)
            a.label('L_qp8x')
            a.wait(vm=12, lgkm=0)
        else:
            a.wait(vm=14 if n == 0 else 7, lgkm=0)
        a.ctl('s_barrier')
        for f in qp_reads(0): f()
        if 1 <= n <= 6: qp_issue(n + 2)
        if n in (7, 8):
            a.salu(f's_cmp_lg_u32 s{S_G}, 0')
            a.ctl(f's_cbranch_scc1 L_qpkv{n}')
            for slot in ((0, 1, 2) if n == 7 else (3, 4)):
                for f in kv_issue_list(slot): f()
            a.label(f'L_qpkv{n}')
        for f in interleave(qp_mfmas(0), qp_reads(1)): f()
        delta = QBUF if n % 3 != 2 else -2*QBUF
        adds = []
        if n < 8:
            for r in VXA + VXN + [VWA+i for i in range(8)]:
                adds.append(lambda r=r: a.valu(f'v_add_u32 v{r}, {delta & 0xffffffff}, v{r}'))
        m1 = qp_mfmas(1)
        for f in interleave(m1, adds): f()
    a.salu(f's_mov_b32 s{S_C}, {f2u(CSCALE)}')
    a.ctl('s_nop 7')
    def conv(accbase, qbase, nsig):
        for r in range(8*nsig): a.valu(f'v_mul_f32 v{accbase+r}, s{S_C}, v{accbase+r}')
        for sg in range(nsig):
            for j in range(4):
                a.valu(f'v_cvt_pk_bf16_f32 v{qbase+4*sg+j}, v{accbase+8*sg+2*j}, v{accbase+8*sg+2*j+1}')
        for sg in range(nsig):
            q = qbase + 4*sg
            a.valu(f'v_permlane32_swap_b32 v{q}, v{q+2}')
            a.valu(f'v_permlane32_swap_b32 v{q+1}, v{q+3}')
        for sg in range(nsig):
            q = qbase + 4*sg
            a.valu(f'v_permlane16_swap_b32 v{q}, v{q+2}')
            a.valu(f'v_permlane16_swap_b32 v{q+1}, v{q+3}')
    conv(V_O[2], V_Q[2], 1)
    a.salu(f's_lshl_b32 s{S_T0}, s{S_G}, 12')
    a.salu(f's_add_u32 s{S_T0}, s{S_T0}, {Q9X}')
    a.valu(f'v_lshlrev_b32 v{T}, 4, v0')
    a.valu(f'v_add_u32 v{T}, s{S_T0}, v{T}')
    a.valu(f'v_add_u32 v{T+1}, s{S_M}, v{T}')
    a.ds_write('ds_write_b128', T+1, V_Q[2], 4, 0)
    conv(V_O[0], V_Q[0], 4)
    conv(V_O[1], V_Q[1], 4)
    a.wait(lgkm=0)
    a.ctl('s_barrier')
    for sg in range(1, 4):
        a.salu(f's_add_u32 s{S_T0}, s{S_W4}, {sg}')
        a.salu(f's_and_b32 s{S_T0}, s{S_T0}, 3')
        a.salu(f's_lshl_b32 s{S_T0}, s{S_T0}, 10')
        a.valu(f'v_add_u32 v{T+1+sg}, s{S_T0}, v{T}')
        a.ds_read('ds_read_b128', V_Q[2]+4*sg, 4, T+1+sg, 0)
    for sg in range(4):
        a.salu(f's_add_u32 s{S_T0}, s{S_W4}, {sg}')
        a.salu(f's_and_b32 s{S_T0}, s{S_T0}, 3')
        a.salu(f's_lshl_b32 s{S_T0}, s{S_T0}, 2')
        a.valu(f'v_add_u32 v{T+6}, s{S_T0}, v3')
        a.valu(f'v_xor_b32 v{T+6}, v{T+6}, v2')
        a.valu(f'v_lshlrev_b32 v{T+6}, 4, v{T+6}')
        a.valu(f'v_lshl_add_u32 v{V_AK+sg}, v2, 8, v{T+6}')
    a.valu(f'v_lshrrev_b32 v{T+6}, 2, v2')
    a.valu(f'v_lshl_add_u32 v{T+6}, v3, 2, v{T+6}')
    a.valu(f'v_and_b32 v{T+7}, 3, v0')
    a.valu(f'v_lshlrev_b32 v{T+7}, 3, v{T+7}')
    a.valu(f'v_lshl_add_u32 v{T+7}, v{T+6}, 8, v{T+7}')
    a.valu(f'v_add_u32 v{T+7}, 8192, v{T+7}')
    a.valu(f'v_and_b32 v{T+6}, 7, v{T+6}')
    for tau in range(8):
        a.salu(f's_lshl_b32 s{S_T0}, s{S_W4}, 1')
        a.salu(f's_add_u32 s{S_T0}, s{S_T0}, {tau}')
        a.salu(f's_and_b32 s{S_T0}, s{S_T0}, 7')
        a.valu(f'v_xor_b32 v{T+8}, s{S_T0}, v{T+6}')
        a.valu(f'v_lshl_add_u32 v{V_AV+tau}, v{T+8}, 5, v{T+7}')
    for r in range(8, 104): a.valu(f'v_mov_b32 v{r}, 0')
    for r in range(4): a.valu(f'v_mov_b32 v{V_ONES+r}, 0x3f803f80')
    a.salu(f's_mov_b32 s{S_T}, 0xff800000')
    a.salu(f's_mov_b32 s{S_FLOOR}, 0xff800000')
    a.wait(lgkm=0)
    a.salu(f's_cmp_eq_u32 s{S_G}, 0')
    a.ctl('s_cbranch_scc1 L_xstart')
    a.salu(f's_mov_b32 s{S_STEP}, 0')
    a.label('L_yidle')
    a.ctl('s_barrier')
    a.salu(f's_add_u32 s{S_STEP}, s{S_STEP}, 1')
    a.salu(f's_cmp_lt_u32 s{S_STEP}, 32')
    a.ctl('s_cbranch_scc1 L_yidle')
    a.salu(f's_mov_b32 s{S_END}, 64')
    a.salu(f's_mov_b32 s{S_GOFS}, {(32+NS-1)*8192}')
    ypos = 32 % NS
    if ypos >= 4 or ypos == 0:
        raise Exception('adjust address base for y entry')
    a.ctl(f's_branch L_body{ypos}')
    a.label('L_xstart')
    a.salu(f's_mov_b32 s{S_STEP}, 0')
    a.salu(f's_mov_b32 s{S_END}, 32')
    for r in range(12): a.valu(f'v_add_u32 v{V_AK+r}, 0x10000, v{V_AK+r}')

    stubs = []
    for p in range(NS):
        a.label(f'L_body{p}')
        a.wait(vm=4*(NS-2), lgkm=0)
        a.ctl('s_barrier')
        if p == 0:
            for r in range(4): a.valu(f'v_add_u32 v{V_AK+r}, 0xffff0000, v{V_AK+r}')
        if p == 4:
            for r in range(4): a.valu(f'v_add_u32 v{V_AK+r}, 0x10000, v{V_AK+r}')
        so = (p % 4) * 16384
        for kt in range(2):
            for sg in range(4):
                a.ds_read('ds_read_b128', V_KV + 4*(kt*4+sg), 4, V_AK+sg, so + kt*4096)
        M = []
        for t in range(3):
            for kt in range(2):
                for sg in range(4):
                    d = V_S[t] + 4*kt
                    M.append(lambda t=t, kt=kt, sg=sg, d=d: a.mfma(d, V_KV+4*(kt*4+sg), V_Q[t]+4*sg, V_NM[t] if sg == 0 else d))
        for t in range(3):
            for tau in range(8 if t < 2 else 2):
                M.append(lambda t=t, tau=tau: a.mfma(V_O[t]+4*tau, V_KV+4*tau, V_S[t], V_O[t]+4*tau))
            M.append(lambda t=t: a.mfma(V_L[t], V_ONES, V_S[t], V_L[t]))
        gaps = [[] for _ in M]
        def place(items, g0, g1):
            n = len(items); span = g1 - g0 + 1
            for i, f in enumerate(items):
                gaps[g0 + i * span // n].append(f)
        def sm(t):
            s = V_S[t]; mx = V_T + t
            L = []
            L.append(lambda: a.valu(f'v_max3_f32 v{mx}, v{s}, v{s+1}, v{s+2}'))
            L.append(lambda: a.valu(f'v_max3_f32 v{mx}, v{mx}, v{s+3}, v{s+4}'))
            L.append(lambda: a.valu(f'v_max3_f32 v{mx}, v{mx}, v{s+5}, v{s+6}'))
            def chk():
                a.valu(f'v_max_f32 v{mx}, v{mx}, v{s+7}')
                a.valu(f'v_cmp_lt_f32 vcc, s{S_T}, v{mx}')
                a.ctl(f's_cbranch_vccnz L_stub{p}_{t}')
                a.label(f'L_back{p}_{t}')
                stubs.append((p, t))
            L.append(chk)
            for j in range(4):
                L.append(lambda j=j: a.valu(f'v_exp_f32 v{s+2*j}, v{s+2*j}'))
                L.append(lambda j=j: a.valu(f'v_exp_f32 v{s+2*j+1}, v{s+2*j+1}'))
                if j > 0:
                    L.append(lambda j=j: a.valu(f'v_cvt_pk_bf16_f32 v{s+j-1}, v{s+2*j-2}, v{s+2*j-1}'))
            L.append(lambda: a.valu(f'v_cvt_pk_bf16_f32 v{s+3}, v{s+6}, v{s+7}'))
            return L
        fill0 = kv_issue_list((p + NS - 1) % NS)
        if p in (0, 4):
            c = '0xffff0000' if p == 0 else '0x10000'
            fill0 += [lambda r=r, c=c: a.valu(f'v_add_u32 v{V_AV+r}, {c}, v{V_AV+r}') for r in range(8)]
        place(fill0, 0, 9)
        place(sm(0), 11, 20)
        for tau in range(8):
            for rd in range(2):
                gaps[16+tau].append(lambda tau=tau, rd=rd: a.ds_read('ds_read_b64_tr_b16', V_KV+4*tau+2*rd, 2, V_AV+tau, so + rd*4096))
        place(sm(1), 21, 31)
        place(sm(2), 32, 40)
        gaps[42].append(lambda: a.salu(f's_add_u32 s{S_STEP}, s{S_STEP}, 1'))
        gaps[42].append(lambda: a.salu(f's_mov_b32 s{S_T}, 0x41000000'))
        gaps[43].append(lambda: a.salu(f's_mov_b32 s{S_FLOOR}, 0'))
        gaps[43].append(lambda: a.salu(f's_cmp_eq_u32 s{S_STEP}, s{S_END}'))
        for i, m in enumerate(M):
            m()
            for f in gaps[i]: f()
        a.ctl('s_cbranch_scc1 L_attn_done')
    a.ctl('s_branch L_body0')
    for (p, t) in stubs:
        a.label(f'L_stub{p}_{t}')
        a.ctl(f's_call_b64 s[{S_RET}:{S_RET+1}], L_rare{t}')
        a.ctl(f's_branch L_back{p}_{t}')
    for t in range(3):
        a.label(f'L_rare{t}')
        mx = V_T + t; t1 = V_T + 4; t2 = V_T + 5
        a.ctl('s_nop 7')
        a.valu(f'v_mov_b32 v{t1}, v{mx}')
        a.valu(f'v_permlane32_swap_b32 v{mx}, v{t1}')
        a.valu(f'v_max_f32 v{mx}, v{mx}, v{t1}')
        a.valu(f'v_mov_b32 v{t1}, v{mx}')
        a.valu(f'v_permlane16_swap_b32 v{mx}, v{t1}')
        a.valu(f'v_max_f32 v{mx}, v{mx}, v{t1}')
        a.valu(f'v_max_f32 v{mx}, s{S_FLOOR}, v{mx}')
        a.valu(f'v_max_f32 v{t2}, 0, v{mx}')
        a.valu(f'v_exp_f32 v{t2}, -v{t2}')
        for r in range(4): a.valu(f'v_sub_f32 v{V_NM[t]+r}, v{V_NM[t]+r}, v{mx}')
        for r in range(8): a.valu(f'v_sub_f32 v{V_S[t]+r}, v{V_S[t]+r}, v{mx}')
        for r in range(32 if t < 2 else 8): a.valu(f'v_mul_f32 v{V_O[t]+r}, v{V_O[t]+r}, v{t2}')
        for r in range(4): a.valu(f'v_mul_f32 v{V_L[t]+r}, v{V_L[t]+r}, v{t2}')
        a.ctl('s_nop 1')
        a.ctl(f's_setpc_b64 s[{S_RET}:{S_RET+1}]')

    a.label('L_attn_done')
    a.salu(f's_cmp_lg_u32 s{S_G}, 0')
    a.ctl('s_cbranch_scc1 L_epi')
    a.wait(vm=4*(NS-2), lgkm=0)
    a.ctl('s_barrier')
    a.label('L_epi')
    a.ctl('s_nop 7')
    a.valu(f'v_lshlrev_b32 v{T+6}, 4, v0')
    nst = 0
    for t in range(3):
        a.valu(f'v_rcp_f32 v{T+t}, v{V_L[t]}')
    for t in range(3):
        nsig = 4 if t < 2 else 1
        for r in range(8*nsig): a.valu(f'v_mul_f32 v{V_O[t]+r}, v{V_O[t]+r}, v{T+t}')
        for sg in range(nsig):
            dst = V_Q[t] + 4*sg
            for j in range(4):
                a.valu(f'v_cvt_pk_bf16_f32 v{dst+j}, v{V_O[t]+8*sg+2*j}, v{V_O[t]+8*sg+2*j+1}')
            a.salu(f's_add_u32 s{S_T0}, s{S_W4}, {sg}')
            a.salu(f's_and_b32 s{S_T0}, s{S_T0}, 3')
            a.salu(f's_lshl_b32 s{S_T0}, s{S_T0}, 10')
            if t < 2:
                a.salu(f's_lshl_b32 s{S_T1}, s{S_W4}, 18')
                a.salu(f's_add_u32 s{S_T0}, s{S_T0}, s{S_T1}')
                if t: a.salu(f's_add_u32 s{S_T0}, s{S_T0}, 131072')
            else:
                a.salu(f's_add_u32 s{S_T0}, s{S_T0}, {8*131072}')
            a.vmem(f'buffer_store_dwordx4 v[{dst}:{dst+3}], v{T+6}, s[{S_O}:{S_O+3}], s{S_T0} offen{o_flags}')
            nst += 1
    a.salu(f's_cmp_lg_u32 s{S_G}, 0')
    a.ctl('s_cbranch_scc1 L_k1_end')
    for i in range(1, NS-1):
        a.wait(vm=4*(NS-2-i) + nst)
        a.ctl('s_barrier')
    a.label('L_k1_end')
    a.ctl('s_endpgm')
    return name

def k2(a, o_flags='', w_flags=''):
    name = 'oproj_kernel'
    D = 4
    a.raw(f'.globl {name}\n.p2align 8\n.type {name},@function\n{name}:')
    a.salu('s_cmp_ge_u32 s2, 216')
    a.ctl('s_cbranch_scc1 L_k2_end')
    a.raw('  s_load_dwordx8 s[12:19], s[0:1], 32')
    a.valu('v_lshrrev_b32 v1, 6, v0')
    a.valu('v_and_b32 v0, 63, v0')
    a.valu('v_readfirstlane_b32 s42, v1')
    a.salu('s_and_b32 s50, s2, 7')
    a.salu('s_lshr_b32 s51, s2, 3')
    a.salu('s_mul_i32 s52, s51, 57')
    a.salu('s_lshr_b32 s52, s52, 9')
    a.salu('s_mul_i32 s53, s52, 9')
    a.salu('s_sub_u32 s53, s51, s53')
    a.salu('s_mul_i32 s54, s50, 3')
    a.salu('s_add_u32 s54, s54, s52')
    a.valu('v_and_b32 v2, 15, v0')
    a.valu('v_lshrrev_b32 v3, 4, v0')
    a.raw('  s_waitcnt lgkmcnt(0)')
    a.salu(f's_mul_i32 s55, s54, {6*131072}')
    a.salu('s_add_u32 s20, s18, s55'); a.salu('s_addc_u32 s21, s19, 0')
    a.salu(f's_mov_b32 s22, {6*131072}'); a.salu('s_mov_b32 s23, 0x20000')
    a.salu('s_lshl_b32 s55, s53, 7')
    a.salu('s_add_u32 s24, s12, s55'); a.salu('s_addc_u32 s25, s13, 0')
    a.salu(f's_sub_u32 s26, {4096*1152}, s55'); a.salu('s_mov_b32 s27, 0x20000')
    a.salu(f's_mul_i32 s56, s54, {96*1152}')
    a.salu('s_add_u32 s56, s56, s55')
    a.salu('s_add_u32 s28, s14, s56'); a.salu('s_addc_u32 s29, s15, 0')
    a.salu(f's_sub_u32 s30, {2304*1152}, s56'); a.salu('s_mov_b32 s31, 0x20000')
    ACC = 8
    OF = 104
    WF = OF + D*24
    VO = 216
    VW = 222
    VA = 224
    T = 228
    for rb in range(6):
        a.valu(f'v_lshlrev_b32 v{VO+rb}, 4, v0')
        if rb: a.valu(f'v_add_u32 v{VO+rb}, {rb*131072}, v{VO+rb}')
    a.valu(f'v_lshrrev_b32 v{T}, 3, v0')
    a.valu(f'v_mul_u32_u24 v{T}, 1152, v{T}')
    a.valu(f'v_lshlrev_b32 v{T+1}, 1, v3')
    a.valu(f'v_and_b32 v{T+2}, 7, v0')
    a.valu(f'v_xor_b32 v{T+1}, v{T+1}, v{T+2}')
    a.valu(f'v_lshl_add_u32 v{VW}, v{T+1}, 4, v{T}')
    a.salu('s_lshl_b32 s44, s42, 10')
    a.salu(f's_mul_i32 s45, s42, {32*1152}')
    a.salu(f's_mul_i32 s46, s42, {D*4096}')
    def issue(e):
        for jj in range(4):
            a.salu(f's_add_u32 m0, s46, {e*4096 + jj*1024}')
            a.salu(f's_add_u32 s47, s45, {jj*8*1152}')
            a.vmem(f'buffer_load_dwordx4 v{VW}, s[24:27], s47 offen{w_flags} lds')
        for rb in range(6):
            a.vmem(f'buffer_load_dwordx4 v[{OF+e*24+rb*4}:{OF+e*24+rb*4+3}], v{VO+rb}, s[20:23], s44 offen{o_flags}')
        a.salu('s_add_u32 s44, s44, 4096')
        a.salu(f's_add_u32 s45, s45, {4*32*1152}')
    for e in range(D): issue(e)
    a.valu(f'v_lshrrev_b32 v{T}, 2, v2')
    a.valu(f'v_lshl_add_u32 v{T}, v3, 2, v{T}')
    a.valu(f'v_and_b32 v{T+1}, 3, v0')
    a.valu(f'v_lshlrev_b32 v{T+1}, 3, v{T+1}')
    a.valu(f'v_lshl_add_u32 v{T+1}, v{T}, 7, v{T+1}')
    a.valu(f'v_add_u32 v{T+1}, s46, v{T+1}')
    a.valu(f'v_bfe_u32 v{T}, v{T}, 1, 2')
    for ns in range(4):
        a.salu(f's_add_u32 s47, s42, {ns}')
        a.salu('s_and_b32 s47, s47, 3')
        a.valu(f'v_xor_b32 v{T+2}, s47, v{T}')
        a.valu(f'v_lshl_add_u32 v{VA+ns}, v{T+2}, 5, v{T+1}')
    for r in range(96): a.valu(f'v_mov_b32 v{ACC+r}, 0')
    def stage(e, vm, do_issue):
        a.wait(vm=vm)
        for ns in range(4):
            for rd in range(2):
                a.ds_read('ds_read_b64_tr_b16', WF+4*ns+2*rd, 2, VA+ns, e*4096 + rd*2048)
        for ns in range(4):
            for rb in range(6):
                a.mfma(ACC+(ns*6+rb)*4, WF+4*ns, OF+e*24+rb*4, ACC+(ns*6+rb)*4)
        if do_issue: issue(e)
    a.salu('s_mov_b32 s48, 0')
    a.label('L_k2loop')
    for e in range(D): stage(e, 10*(D-1), True)
    a.salu('s_add_u32 s48, s48, 1')
    a.salu(f's_cmp_lt_u32 s48, {32//D - 1}')
    a.ctl('s_cbranch_scc1 L_k2loop')
    for e in range(D): stage(e, 10*(D-1-e), False)
    a.wait(lgkm=0)
    a.ctl('s_barrier')
    a.ctl('s_nop 7')
    a.valu(f'v_lshlrev_b32 v{T}, 4, v0')
    for ns in range(1, 4):
        a.salu(f's_add_u32 s47, s42, {ns}')
        a.salu('s_and_b32 s47, s47, 3')
        a.salu(f's_mul_i32 s47, s47, {18*1024}')
        a.valu(f'v_add_u32 v{T+ns}, s47, v{T}')
        for rb in range(6):
            a.ds_write('ds_write_b128', T+ns, ACC+(ns*6+rb)*4, 4, ((ns-1)*6+rb)*1024)
    a.salu(f's_mul_i32 s47, s42, {18*1024}')
    a.valu(f'v_add_u32 v{T}, s47, v{T}')
    a.wait(lgkm=0)
    a.ctl('s_barrier')
    for k in range(3):
        for rb in range(6):
            a.ds_read('ds_read_b128', ACC+24+(k*6+rb)*4, 4, T, (k*6+rb)*1024)
    a.valu(f'v_mul_u32_u24 v{T+1}, 1152, v2')
    a.valu(f'v_lshl_add_u32 v{T+1}, v3, 3, v{T+1}')
    a.salu('s_lshl_b32 s47, s42, 5')
    a.valu(f'v_add_u32 v{T+1}, s47, v{T+1}')
    for rb in range(6):
        for k in range(3):
            for r in range(4):
                a.valu(f'v_add_f32 v{ACC+rb*4+r}, v{ACC+rb*4+r}, v{ACC+24+(k*6+rb)*4+r}')
        a.valu(f'v_cvt_pk_bf16_f32 v{OF+2*rb}, v{ACC+rb*4}, v{ACC+rb*4+1}')
        a.valu(f'v_cvt_pk_bf16_f32 v{OF+2*rb+1}, v{ACC+rb*4+2}, v{ACC+rb*4+3}')
        a.salu(f's_mov_b32 s47, {rb*16*1152}')
        a.vmem(f'buffer_store_dwordx2 v[{OF+2*rb}:{OF+2*rb+1}], v{T+1}, s[28:31], s47 offen')
    a.label('L_k2_end')
    a.ctl('s_endpgm')
    return name

def build(path, **kw):
    a = Asm()
    hdr = open('standalone__mha_block_cached__near_ridge.s.ref').read().split('; Override')[0]
    a.raw(hdr.rstrip())
    a.raw('; @launch kernel=attn_kernel grid=(256,1,1) block=(512,1,1) lds=163840')
    a.raw('; @launch kernel=oproj_kernel grid=(216,1,1) block=(256,1,1) lds=81920')
    a.raw('.amdgcn_target "amdgcn-amd-amdhsa--gfx950"\n.text')
    k1(a, **{k: v for k, v in kw.items() if k in ('kv_flags', 'w_flags', 'o_flags')})
    a.lq = []
    k2(a)
    txt = a.text().replace('  ; @launch', '; @launch').replace('  ; Kernarg', '; Kernarg').lstrip()
    txt += kd('attn_kernel', NV1) + kd('oproj_kernel', 240)
    open(path, 'w').write(txt)
    print(path, 'nops inserted:', a.nnop, 'lines', txt.count('\n'))

if __name__ == '__main__':
    build('v2a.s')
```

```python
import re

def vr(base, n=1):
    return f'v{base}' if n == 1 else f'v[{base}:{base+n-1}]'
def sr(base, n=1):
    return f's{base}' if n == 1 else f's[{base}:{base+n-1}]'
def vset(base, n=1):
    return {('v', base + i) for i in range(n)}
def sset(base, n=1):
    return {('s', base + i) for i in range(n)}

_reg_re = re.compile(r'\b([vs])(\d+)\b|\b([vs])\[(\d+):(\d+)\]|\b(vcc|exec|m0|scc)\b')
def regs_of(txt):
    out = set()
    for m in _reg_re.finditer(txt):
        if m.group(1): out.add((m.group(1), int(m.group(2))))
        elif m.group(3):
            for i in range(int(m.group(4)), int(m.group(5)) + 1): out.add((m.group(3), i))
        else: out.add((m.group(6), 0))
    return out

TRANS = ('v_exp_f32', 'v_log_f32', 'v_rcp_f32', 'v_rsq_f32', 'v_sqrt_f32')

class Ins:
    __slots__ = ('text', 'kind', 'rd', 'wr', 'srcc', 'states', 'label')
    def __init__(s, text, kind, rd=(), wr=(), srcc=(), states=1):
        s.text = text; s.kind = kind; s.rd = set(rd); s.wr = set(wr); s.srcc = set(srcc); s.states = states

class Asm:
    def __init__(s):
        s.out = []
        s.lq = []
        s.eager = 0
        s.auto_nop = True
        s.nnop = 0
    def raw(s, text):
        s.out.append(Ins(text, 'raw', states=0))
    def label(s, name):
        s.out.append(Ins(name + ':', 'label', states=0))
    def comment(s, t):
        s.out.append(Ins('; ' + t, 'raw', states=0))
    def _need(s, ins):
        need = 0
        dist = 0
        for p in reversed(s.out):
            if dist >= 20: break
            if p.kind in ('raw', 'label'):
                continue
            req = 0
            if p.kind == 'mfma':
                if ins.kind == 'mfma':
                    if p.wr & ins.srcc:
                        req = max(req, 0 if p.wr == ins.srcc else 6)
                    if p.wr & (ins.rd - ins.srcc): req = max(req, 8)
                    if (p.wr & ins.wr) and p.wr != ins.srcc: req = max(req, 8)
                elif ins.kind in ('valu', 'trans', 'perm', 'ds', 'vmem', 'rfl'):
                    if p.wr & (ins.rd | ins.wr): req = max(req, 8)
                    if ins.kind in ('valu', 'trans', 'perm') and (p.srcc & ins.wr): req = max(req, 3)
            if p.kind in ('valu', 'trans', 'perm', 'rfl'):
                vw = {r for r in p.wr if r[0] == 'v'}
                sw = {r for r in p.wr if r[0] in ('s', 'vcc')}
                if ins.kind == 'mfma' and (vw & ins.rd): req = max(req, 2)
                if ins.kind == 'perm' and (vw & ins.rd): req = max(req, 2)
                if ins.kind == 'rfl' and (vw & ins.rd): req = max(req, 1)
                if p.kind == 'trans' and ins.kind in ('valu', 'perm', 'rfl', 'mfma') and (vw & ins.rd): req = max(req, 1)
                if ins.kind in ('valu', 'trans', 'perm', 'rfl', 'mfma') and (sw & ins.rd): req = max(req, 2)
                if ins.kind == 'vmem' and (sw & ins.rd): req = max(req, 5)
                if ins.kind == 'salu' and (sw & ins.rd): req = max(req, 1)
            if p.kind == 'salu' and ('m0', 0) in p.wr and ins.kind == 'vmem' and ('m0', 0) in ins.rd: req = max(req, 1)
            if p.kind == 'vmem' and 'store' in p.text and ('x4' in p.text or 'x3' in p.text):
                data = regs_of(p.text.split(',')[0])
                if data & ins.wr: req = max(req, 2)
            need = max(need, req - dist)
            dist += p.states
        return need
    def _lgkm(s, ins):
        touched = ins.rd | ins.wr
        idx = -1
        for i, (d, pos) in enumerate(s.lq):
            if d & touched: idx = i
        if idx >= 0:
            if s.eager:
                now = len(s.out)
                while idx + 1 < len(s.lq) and now - s.lq[idx + 1][1] >= s.eager: idx += 1
            n = len(s.lq) - 1 - idx
            n = min(n, 14)
            s.out.append(Ins(f's_waitcnt lgkmcnt({n})', 'wait'))
            s.lq = s.lq[len(s.lq) - n:] if n else []
    def emit(s, ins):
        s._lgkm(ins)
        need = s._need(ins)
        if need > 0:
            assert s.auto_nop
            s.nnop += need
            while need > 0:
                k = min(need, 16)
                s.out.append(Ins(f's_nop {k-1}', 'nop', states=k))
                need -= k
        s.out.append(ins)
    def valu(s, text, extra_rd=(), extra_wr=()):
        op, rest = text.split(None, 1)
        parts = [p.strip() for p in rest.split(',')]
        wr = regs_of(parts[0]); rd = set()
        k = 1
        if op.startswith(('v_add_co', 'v_sub_co', 'v_addc_co')):
            wr |= regs_of(parts[1]); k = 2
        for p in parts[k:]: rd |= regs_of(p)
        if op.startswith(('v_fmac', 'v_mac')): rd |= regs_of(parts[0])
        kind = 'valu'
        if op.startswith(TRANS): kind = 'trans'
        if op.startswith('v_permlane'):
            kind = 'perm'; rd |= regs_of(parts[0]); wr |= regs_of(parts[1])
        if op.startswith(('v_readfirstlane', 'v_readlane')): kind = 'rfl'
        s.emit(Ins(text, kind, rd | set(extra_rd), wr | set(extra_wr)))
    def salu(s, text):
        op, *rest = text.split(None, 1)
        rd = set(); wr = set()
        if rest:
            parts = [p.strip() for p in rest[0].split(',')]
            if op.startswith(('s_cmp', 's_bitcmp')):
                for p in parts: rd |= regs_of(p)
            else:
                wr = regs_of(parts[0])
                for p in parts[1:]: rd |= regs_of(p)
        s.emit(Ins(text, 'salu', rd, wr))
    def ctl(s, text):
        rd = set()
        if 'vcc' in text: rd.add(('vcc', 0))
        st = 1
        m = re.match(r's_nop (\d+)', text)
        if m: st = int(m.group(1)) + 1
        s.out.append(Ins(text, 'ctl', rd, states=st))
    def mfma(s, d, a, b, c):
        ctext = '0' if c is None else vr(c, 4)
        srcc = set() if c is None else vset(c, 4)
        s.emit(Ins(f'v_mfma_f32_16x16x32_bf16 {vr(d,4)}, {vr(a,4)}, {vr(b,4)}, {ctext}', 'mfma',
                   vset(a, 4) | vset(b, 4) | srcc, vset(d, 4), srcc))
    def ds_read(s, op, d, n, addr, off=0):
        assert 0 <= off < 65536, off
        s.emit(Ins(f'{op} {vr(d,n)}, v{addr} offset:{off}', 'ds', vset(addr), vset(d, n)))
        s.lq.append((vset(d, n), len(s.out)))
    def ds_write(s, op, addr, src, n, off=0):
        assert 0 <= off < 65536, off
        s.emit(Ins(f'{op} v{addr}, {vr(src,n)} offset:{off}', 'ds', vset(addr) | vset(src, n), set()))
        s.lq.append(({('store', len(s.out))}, len(s.out)))
    def vmem(s, text, rd=(), wr=()):
        op, rest = text.split(None, 1)
        r = regs_of(rest)
        w = set()
        if 'load' in op and ' lds' not in text:
            w = regs_of(rest.split(',')[0]); r = regs_of(','.join(rest.split(',')[1:]))
        if ' lds' in text: r.add(('m0', 0))
        s.emit(Ins(text, 'vmem', r | set(rd), w | set(wr)))
    def wait(s, vm=None, lgkm=None):
        t = 's_waitcnt'
        if vm is not None:
            assert 0 <= vm <= 63
            t += f' vmcnt({vm})'
        if lgkm is not None:
            t += f' lgkmcnt({lgkm})'
            s.lq = s.lq[len(s.lq) - lgkm:] if lgkm else []
        s.out.append(Ins(t, 'wait'))
    def text(s):
        return '\n'.join(('' if i.kind in ('label',) else '  ') + i.text for i in s.out) + '\n'

def interleave(main, fill, pattern=None):
    res = []
    n, m = len(main), len(fill)
    k = 0
    for i, f in enumerate(main):
        res.append(f)
        tgt = (i + 1) * m // n if n else m
        while k < tgt:
            res.append(fill[k]); k += 1
    res += fill[k:]
    return res

def kd(name, vgpr, sgpr=102):
    acc = (vgpr + 3) // 4 * 4
    return f'''.section .rodata,"a"
.p2align 6
.amdhsa_kernel {name}
  .amdhsa_next_free_vgpr {vgpr}
  .amdhsa_next_free_sgpr {sgpr}
  .amdhsa_accum_offset {acc}
  .amdhsa_group_segment_fixed_size 0
  .amdhsa_kernarg_size 64
  .amdhsa_user_sgpr_count 2
  .amdhsa_user_sgpr_kernarg_segment_ptr 1
  .amdhsa_system_sgpr_workgroup_id_x 1
.end_amdhsa_kernel
'''
```

```python
from asmlib import *

STG = 18432
PSB = 4*STG
EX_OFF = 0x2800000
SLOT = 21*1024
BSTART = [0, 21, 41, 61, 81]
def tiles(wb): return [(i // 9, i % 9) for i in range(BSTART[wb], BSTART[wb+1])]

def wo_voffsets(a, base, T, sub):
    for i in range(9):
        a.valu(f'v_add_u32 v{T}, {64*i}, v0')
        a.valu(f'v_mul_u32_u24 v{T+1}, 3641, v{T}')
        a.valu(f'v_lshrrev_b32 v{T+1}, 16, v{T+1}')
        a.valu(f'v_mul_u32_u24 v{T+1}, {1152-288}, v{T+1}')
        if sub and i % 4: a.valu(f'v_subrev_u32 v{T+1}, {(i % 4)*1024}, v{T+1}')
        a.valu(f'v_lshl_add_u32 v{base+i}, v{T}, 4, v{T+1}')

def unit_srds(a, G, srd):
    g = lambda n: G[n]
    S_T0, S_T1, S_T2, S_B, S_PO, S_PW = map(g, ('S_T0', 'S_T1', 'S_T2', 'S_B', 'S_PO', 'S_PW'))
    S_NQ, S_KQ = g('S_NQ'), g('S_KQ')
    a.salu(f's_mul_i32 s{S_T0}, s{S_B}, {9*131072}')
    a.salu(f's_lshl_b32 s{S_T1}, s{S_KQ}, 15')
    a.salu(f's_add_u32 s{S_T0}, s{S_T0}, s{S_T1}')
    a.salu(f's_sub_u32 s{S_T2}, {9*131072}, s{S_T1}')
    srd(S_PO, 18, 19, f's{S_T0}', f's{S_T2}')
    a.salu(f's_mul_i32 s{S_T0}, s{S_KQ}, {1024*1152}')
    a.salu(f's_mul_i32 s{S_T1}, s{S_NQ}, 288')
    a.salu(f's_add_u32 s{S_T0}, s{S_T0}, s{S_T1}')
    a.salu(f's_sub_u32 s{S_T2}, {4096*1152}, s{S_T0}')
    srd(S_PW, 12, 13, f's{S_T0}', f's{S_T2}')

def trole(a, G, stamp, vconst, srd, spin_lds, wd, PG, w_flags, diag, b_pub, lane0_addr, run, pp=1, rotb=True):
    g = lambda n: G[n]
    S_W, S_W4, S_G, S_T0, S_T1, S_T2, S_B = map(g, ('S_W', 'S_W4', 'S_G', 'S_T0', 'S_T1', 'S_T2', 'S_B'))
    S_PO, S_PW, S_OUT, S_FLG, S_NQ, S_KQ, S_RO = map(g, ('S_PO', 'S_PW', 'S_OUT', 'S_FLG', 'S_NQ', 'S_KQ', 'S_RO'))
    S_TAG = g('S_TAG'); F_TAG = g('F_TAG'); FLAG_OFF = g('FLAG_OFF')
    F_PL, F_PC, F_RA = g('F_PL'), g('F_PC'), g('F_RA')
    S_TK, S_SO, S_LD, S_RDY, S_I, S_EX = 59, 60, 61, 62, 63, 88
    VD2 = 255
    T = 232
    VW = 216
    VL, VFL, VP = 225, 226, 227
    ACC = 8
    stamp(VD2, 13)
    def flags_setup(vfl):
        spin_lds(F_TAG, 1, f'L_t_tag{vfl}', reg=T)
        a.valu(f'v_readfirstlane_b32 s{S_TAG}, v{T}')
        a.valu(f'v_and_b32 v{vfl}, 7, v0')
        a.valu(f'v_lshlrev_b32 v{vfl}, 2, v{vfl}')
        a.salu(f's_lshl_b32 s{S_T0}, s{S_B}, 7')
        a.salu(f's_lshl_b32 s{S_T1}, s{S_KQ}, 5')
        a.salu(f's_add_u32 s{S_T0}, s{S_T0}, s{S_T1}')
        a.valu(f'v_add_u32 v{vfl}, s{S_T0}, v{vfl}')
    def frag_addr(ao, aw, row0, base):
        a.salu(f's_mov_b32 s{S_T0}, {base + row0*1024}')
        a.valu(f'v_lshl_add_u32 v{ao}, v0, 4, s{S_T0}')
        a.valu(f'v_lshrrev_b32 v{T}, 2, v2')
        a.valu(f'v_lshl_add_u32 v{T}, v3, 2, v{T}')
        a.valu(f'v_mul_u32_u24 v{T}, 288, v{T}')
        a.valu(f'v_and_b32 v{T+1}, 3, v0')
        a.valu(f'v_lshl_add_u32 v{T}, v{T+1}, 3, v{T}')
        a.valu(f'v_add_u32 v{aw}, {base + 9216}, v{T}')
    a.salu(f's_cmp_lg_u32 s{S_G}, 0')
    a.ctl('s_cbranch_scc1 L_t_y')
    a.salu(f's_cmp_lt_u32 s{S_W}, 2')
    a.ctl('s_cbranch_scc1 L_t_x01')

    a.ctl(f's_setprio {pp}')
    WFP, OFP = 172, [208, 228]
    AO, AW, QCO, QF, QV, QLA = 248, 249, 250, 251, 4, 5
    a.salu(f's_cmp_lg_u32 s{S_W}, 2')
    a.ctl('s_cbranch_scc1 L_p_set')
    flags_setup(6)
    a.label('L_p_ra')
    a.vmem(f'buffer_load_dword v7, v6, s[{S_FLG}:{S_FLG+3}], 0 offen sc1')
    a.wait(vm=0)
    a.valu(f'v_cmp_eq_u32 vcc, s{S_TAG}, v7')
    a.ctl('s_nop 1')
    a.raw(f'  s_and_b32 s{S_T0}, vcc_lo, 0x55')
    a.salu(f's_cmp_eq_u32 s{S_T0}, 0x55')
    a.ctl('s_cbranch_scc1 L_p_rb')
    wd()
    a.ctl('s_sleep 12')
    a.ctl('s_branch L_p_ra')
    a.label('L_p_rb')
    lane0_addr(6, F_RA)
    vconst(7, 1)
    a.lq = []
    a.ds_write('ds_write_b32', 6, 7, 1, 0)
    a.label('L_p_set')
    a.salu(f's_lshl_b32 s{S_T0}, s{S_W4}, 2')
    a.salu(f's_add_u32 s{S_T0}, s{S_T0}, {F_PC - 8}')
    lane0_addr(QCO, f's{S_T0}')
    vconst(QLA, F_PL); vconst(QF, 0); vconst(QV, 1)
    for r in range(164): vconst(ACC+r, 0)
    a.salu(f's_mov_b32 s{S_TK}, 0')
    nh = [0]
    def q_need():
        nh[0] += 1
        lab = f'L_ph{nh[0]}'
        a.valu(f'v_cmp_le_u32 vcc, v{QV}, v{QF}')
        a.ctl(f's_cbranch_vccnz {lab}_ok')
        a.label(lab)
        wd()
        a.ctl('s_sleep 3')
        a.ds_read('ds_read_b32', QF, 1, QLA, 0)
        a.wait(lgkm=0)
        a.valu(f'v_cmp_le_u32 vcc, v{QV}, v{QF}')
        a.ctl(f's_cbranch_vccz {lab}')
        a.label(f'{lab}_ok')
    a.salu(f's_cmp_eq_u32 s{S_W}, 3')
    a.ctl('s_cbranch_scc1 L_p1')
    for pv_ in range(2):
        if pv_: a.label('L_p1')
        row0 = 4*pv_
        frag_addr(AO, AW, row0, PSB)
        tl = [(r, nu, ACC + 4*k) for k, (r, nu) in enumerate(tiles(2*pv_))] + [(r, nu, ACC + 84 + 4*k) for k, (r, nu) in enumerate(tiles(2*pv_+1))]
        tl.sort(key=lambda x: (x[1], x[0]))
        def wread(nu): return [lambda rd=rd: a.ds_read('ds_read_b64_tr_b16', WFP+4*nu+2*rd, 2, AW, nu*32 + rd*16*288) for rd in range(2)]
        def oread(b, r): return lambda: a.ds_read('ds_read_b128', OFP[b]+4*r, 4, AO, r*1024)
        def advance():
            a.salu(f's_add_u32 s{S_TK}, s{S_TK}, 1')
            a.salu(f's_and_b32 s{S_T0}, s{S_TK}, 3')
            a.salu(f's_cmp_eq_u32 s{S_T0}, 0')
            a.salu(f's_cselect_b32 s{S_T0}, -3, 1')
            a.salu(f's_mul_i32 s{S_T0}, s{S_T0}, {STG}')
            a.valu(f'v_add_u32 v{AO}, s{S_T0}, v{AO}')
            a.valu(f'v_add_u32 v{AW}, s{S_T0}, v{AW}')
        a.lq = []
        q_need()
        for nu in range(9):
            for f in wread(nu): f()
        for r in range(5): oread(0, r)()
        a.label(f'L_pl{pv_}')
        for b in range(2):
            a.wait(lgkm=0)
            a.ds_write('ds_write_b32', QCO, QV, 1, 0)
            a.valu(f'v_add_u32 v{QV}, 1, v{QV}')
            a.valu(f'v_min_u32 v{QV}, 16, v{QV}')
            advance()
            q_need()
            M = [lambda r=r, nu=nu, d=d: a.mfma(d, WFP+4*nu, OFP[b]+4*(r-row0), d) for (r, nu, d) in tl]
            gaps = [[] for _ in M]
            last = {}
            for i, (r, nu, d) in enumerate(tl): last[nu] = i
            for nu in range(9): gaps[last[nu]] += wread(nu)
            for r in range(5): gaps[2 + 6*r].append(oread(b ^ 1, r))
            gaps[len(M)-3].append(lambda: a.ds_read('ds_read_b32', QF, 1, QLA, 0))
            run(M, gaps)
        a.salu(f's_cmp_lt_u32 s{S_TK}, 16')
        a.ctl(f's_cbranch_scc1 L_pl{pv_}')
        if pv_ == 0: a.ctl('s_branch L_p_end')
    a.label('L_p_end')
    stamp(VD2, 18)
    a.lq = []
    a.wait(lgkm=0)
    vconst(QV, 17)
    a.ds_write('ds_write_b32', QCO, QV, 1, 0)
    a.salu(f's_lshl_b32 s{S_T0}, s{S_W4}, 2')
    a.salu(f's_xor_b32 s{S_T0}, s{S_T0}, 4')
    a.salu(f's_add_u32 s{S_T0}, s{S_T0}, {F_PC - 8}')
    a.valu(f'v_mov_b32 v{QLA}, s{S_T0}')
    vconst(QF, 0)
    q_need()
    a.salu(f's_and_b32 s{S_T0}, s{S_W4}, 1')
    a.salu(f's_mul_i32 s{S_T0}, s{S_T0}, 20480')
    a.salu(f's_add_u32 s{S_T0}, s{S_T0}, {PSB}')
    a.valu(f'v_lshl_add_u32 v{AO}, v0, 4, s{S_T0}')
    for k in range(20): a.ds_write('ds_write_b128', AO, ACC+84+4*k, 4, k*1024)
    a.wait(lgkm=0)
    a.ctl('s_branch L_t_x')

    a.label('L_t_y')
    unit_srds(a, G, srd)
    a.valu(f'v_lshlrev_b32 v{VL}, 4, v0')
    flags_setup(VFL)
    a.salu(f's_mov_b32 s{S_RDY}, 0')
    wo_voffsets(a, VW, T, False)
    def poll_issue(): a.vmem(f'buffer_load_dword v{VP}, v{VFL}, s[{S_FLG}:{S_FLG+3}], 0 offen sc1')
    def poll_use():
        a.valu(f'v_cmp_eq_u32 vcc, s{S_TAG}, v{VP}')
        a.ctl('s_nop 1')
        a.raw(f'  s_or_b32 s{S_RDY}, s{S_RDY}, vcc_lo')
    def need_ready(lab):
        a.label(lab)
        a.salu(f's_bitcmp1_b32 s{S_RDY}, s{S_I}')
        a.ctl(f's_cbranch_scc1 {lab}_ok')
        poll_issue()
        a.wait(vm=0)
        poll_use()
        a.salu(f's_bitcmp1_b32 s{S_RDY}, s{S_I}')
        a.ctl(f's_cbranch_scc1 {lab}_ok')
        wd()
        a.ctl('s_sleep 2')
        a.ctl(f's_branch {lab}')
        a.label(f'{lab}_ok')
    a.salu(f's_lshr_b32 s{S_EX}, s{S_W4}, 1')
    b_pub('y')
    a.ctl('s_barrier')
    a.ctl('s_setprio 3')
    for kind in range(2):
        if kind == 0:
            a.salu(f's_bitcmp1_b32 s{S_W4}, 0')
            a.ctl('s_cbranch_scc1 L_t_yw')
        else:
            a.label('L_t_yw')
        a.salu(f's_mov_b32 s{S_TK}, 0')
        n = 10 if kind == 0 else 9
        def one(lab):
            a.salu(f's_lshr_b32 s{S_T0}, s{S_TK}, 1')
            a.salu(f's_add_u32 s{S_T1}, s{S_T0}, s{S_NQ}')
            if rotb: a.salu(f's_add_u32 s{S_T1}, s{S_T1}, s{S_B}')
            a.salu(f's_and_b32 s{S_T1}, s{S_T1}, 3')
            a.salu(f's_lshl_b32 s{S_I}, s{S_T1}, 1')
            a.salu(f's_add_u32 s{S_I}, s{S_I}, 1')
            if kind == 0: need_ready(lab)
            a.salu(f's_lshl_b32 s{S_T0}, s{S_TK}, 1')
            a.salu(f's_add_u32 s{S_T0}, s{S_T0}, s{S_EX}')
            a.salu(f's_and_b32 s{S_T1}, s{S_T0}, 7')
            a.salu(f's_mul_i32 s{S_LD}, s{S_T1}, {STG}')
            a.salu(f's_and_b32 s{S_T0}, s{S_T0}, 3')
            a.salu(f's_lshl_b32 s{S_T1}, s{S_I}, 2')
            a.salu(f's_add_u32 s{S_T0}, s{S_T0}, s{S_T1}')
            if kind == 0:
                a.salu(f's_lshl_b32 s{S_SO}, s{S_T0}, 10')
                for i in range(9):
                    a.salu(f's_add_u32 m0, s{S_LD}, {i*1024}')
                    a.salu(f's_add_u32 s{S_T0}, s{S_SO}, {i*131072}')
                    a.vmem(f'buffer_load_dwordx4 v{VL}, s[{S_PO}:{S_PO+3}], s{S_T0} offen sc1 lds')
                poll_issue()
            else:
                a.salu(f's_mul_i32 s{S_SO}, s{S_T0}, {32*1152}')
                for i in range(9):
                    a.salu(f's_add_u32 m0, s{S_LD}, {9216 + i*1024}')
                    a.vmem(f'buffer_load_dwordx4 v{VW+i}, s[{S_PW}:{S_PW+3}], s{S_SO} offen{w_flags} lds')
            a.salu(f's_add_u32 s{S_TK}, s{S_TK}, 1')
        one(f'L_t_a{kind}')
        a.label(f'L_t_yl{kind}')
        one(f'L_t_c{kind}')
        a.wait(vm=n)
        a.ctl('s_barrier')
        if kind == 0: poll_use()
        a.salu(f's_cmp_lt_u32 s{S_TK}, 8')
        a.ctl(f's_cbranch_scc1 L_t_yl{kind}')
        a.wait(vm=0); a.ctl('s_barrier')
        a.ctl('s_branch L_t_ex')

    a.label('L_t_x01')
    spin_lds(F_TAG, 1, 'L_t_tagx', reg=T)
    a.valu(f'v_readfirstlane_b32 s{S_TAG}, v{T}')
    a.label('L_t_x')
    OFR = [92, 104]; WFR = [116, 152]; AO, AW = 228, 229
    for r in list(range(OFR[1], OFR[1]+12)) + list(range(WFR[1], WFR[1]+36)): vconst(r, 0)
    a.valu(f'v_lshlrev_b32 v{VL}, 4, v0')
    a.salu(f's_mov_b32 s{S_TK}, 0')
    spin_lds(F_TAG, 1, 'L_t_tagy', reg=T)
    a.valu(f'v_readfirstlane_b32 s{S_TAG}, v{T}')
    b_pub('x')
    a.wait(vm=0, lgkm=0)
    stamp(VD2, 14)
    a.ctl('s_barrier')
    a.salu(f's_cmp_ge_u32 s{S_W}, 2')
    a.ctl('s_cbranch_scc1 L_t_x2')
    a.salu(f's_mul_i32 s{S_T0}, s{S_W}, 20480')
    a.salu(f's_add_u32 s{S_T0}, s{S_T0}, {PSB}')
    a.valu(f'v_add_u32 v{AO}, s{S_T0}, v{VL}')
    a.lq = []
    for k in range(20): a.ds_read('ds_read_b128', ACC+4*k, 4, AO, k*1024)
    a.label('L_t_x2')
    a.salu(f's_lshl_b32 s{S_T0}, s{S_B}, 2')
    a.salu(f's_add_u32 s{S_I}, s{S_T0}, s{S_NQ}')
    a.salu(f's_mul_i32 s{S_T0}, s{S_I}, {16*SLOT}')
    a.salu(f's_add_u32 s{S_T0}, s{S_T0}, {EX_OFF}')
    srd(S_PO, 18, 19, f's{S_T0}', 16*SLOT)
    a.salu(f's_lshl_b32 s{S_T0}, s{S_I}, 6')
    a.salu(f's_add_u32 s{S_T0}, s{S_T0}, {FLAG_OFF + 4096}')
    srd(S_PW, 18, 19, f's{S_T0}', 64)
    for w in range(1, 4):
        a.salu(f's_cmp_eq_u32 s{S_W}, {w}')
        a.ctl(f's_cbranch_scc1 L_t_v{w}')
    a.eager = 12
    for w, wb in ((0, 1), (1, 3), (2, 0), (3, 2)):
        a.label(f'L_t_v{w}')
        tl = tiles(wb); row0 = tl[0][0]
        frag_addr(AO, AW, row0, 0)
        def reads(b, off):
            L = [lambda r=r: a.ds_read('ds_read_b128', OFR[b]+4*r, 4, AO, off + r*1024) for r in range(3)]
            for nu in range(9):
                for rd in range(2):
                    L.append(lambda nu=nu, rd=rd: a.ds_read('ds_read_b64_tr_b16', WFR[b]+4*nu+2*rd, 2, AW, off + nu*32 + rd*16*288))
            return L
        def mfmas(b):
            o = sorted(range(len(tl)), key=lambda k: (tl[k][1], tl[k][0]))
            return [lambda k=k: a.mfma(ACC+4*k, WFR[b]+4*tl[k][1], OFR[b]+4*(tl[k][0]-row0), ACC+4*k) for k in o]
        a.wait(lgkm=0)
        a.label(f'L_t_xl{w}')
        a.lq = []
        a.ctl('s_barrier')
        a.salu(f's_add_u32 s{S_TK}, s{S_TK}, 1')
        a.salu(f's_and_b32 s{S_T0}, s{S_TK}, 3')
        a.salu(f's_cmp_eq_u32 s{S_T0}, 0')
        a.salu(f's_cselect_b32 s{S_T0}, -3, 1')
        a.salu(f's_mul_i32 s{S_T0}, s{S_T0}, {2*STG}')
        for f in interleave(mfmas(1)[:17], reads(0, 0)): f()
        for f in mfmas(1)[17:]: f()
        for f in interleave(mfmas(0)[:17], reads(1, STG)): f()
        a.valu(f'v_add_u32 v{AO}, s{S_T0}, v{AO}')
        a.valu(f'v_add_u32 v{AW}, s{S_T0}, v{AW}')
        for f in mfmas(0)[17:]: f()
        a.salu(f's_cmp_lt_u32 s{S_TK}, 8')
        a.wait(lgkm=0)
        a.ctl(f's_cbranch_scc1 L_t_xl{w}')
        for f in mfmas(1): f()
        stamp(VD2, 15)
        a.salu(f's_mov_b32 s{S_LD}, {wb}')
        a.salu(f's_cmp_eq_u32 s{S_KQ}, {wb}')
        a.ctl('s_cbranch_scc1 L_t_own')
        if wb == 0:
            a.salu(f's_mul_i32 s{S_SO}, s{S_KQ}, {SLOT}')
            a.salu(f's_add_u32 s{S_T0}, s{S_SO}, {20*1024}')
            a.ctl('s_nop 4')
            a.vmem(f'buffer_store_dwordx4 v[{ACC+80}:{ACC+83}], v{VL}, s[{S_PO}:{S_PO+3}], s{S_T0} offen sc1')
        if w < 3: a.ctl('s_branch L_t_send')
    a.label('L_t_send')
    a.salu(f's_lshl_b32 s{S_T0}, s{S_LD}, 2')
    a.salu(f's_add_u32 s{S_T0}, s{S_T0}, s{S_KQ}')
    a.salu(f's_mul_i32 s{S_SO}, s{S_T0}, {SLOT}')
    a.salu(f's_lshl_b32 s{S_LD}, s{S_T0}, 2')
    a.ctl('s_nop 4')
    for k in range(20):
        if k % 4 == 0: a.salu(f's_add_u32 s{S_T0}, s{S_SO}, {k*1024}')
        a.vmem(f'buffer_store_dwordx4 v[{ACC+4*k}:{ACC+4*k+3}], v{VL}, s[{S_PO}:{S_PO+3}], s{S_T0} offen offset:{(k % 4)*1024} sc1')
    a.valu(f'v_mov_b32 v{T}, s{S_TAG}'); vconst(T+1, 0)
    a.ctl('s_barrier')
    a.wait(vm=0)
    a.salu('s_mov_b64 exec, 1')
    a.vmem(f'buffer_store_dword v{T}, v{T+1}, s[{S_PW}:{S_PW+3}], s{S_LD} offen sc1')
    a.salu('s_mov_b64 exec, -1')
    a.ctl('s_branch L_fin')
    a.label('L_t_own')
    a.ctl('s_nop 7')
    a.lq = []
    for k in range(21): a.ds_write('ds_write_b128', VL, ACC+4*k, 4, k*1024)
    a.wait(lgkm=0)
    a.ctl('s_barrier')
    a.ctl('s_branch L_fin')

    a.label('L_t_ex')
    a.lq = []
    a.salu(f's_lshl_b32 s{S_T0}, s{S_B}, 2')
    a.salu(f's_add_u32 s{S_I}, s{S_T0}, s{S_NQ}')
    a.salu(f's_mul_i32 s{S_T0}, s{S_I}, {16*SLOT}')
    a.salu(f's_add_u32 s{S_T0}, s{S_T0}, {EX_OFF}')
    srd(S_PO, 18, 19, f's{S_T0}', 16*SLOT)
    a.salu(f's_lshl_b32 s{S_T0}, s{S_I}, 6')
    a.salu(f's_add_u32 s{S_T0}, s{S_T0}, {FLAG_OFF + 4096}')
    srd(S_PW, 18, 19, f's{S_T0}', 64)
    a.valu(f'v_and_b32 v{VFL}, 3, v0')
    a.valu(f'v_lshlrev_b32 v{VFL}, 2, v{VFL}')
    a.salu(f's_lshl_b32 s{S_T0}, s{S_KQ}, 4')
    a.valu(f'v_add_u32 v{VFL}, s{S_T0}, v{VFL}')
    a.salu(f's_lshl_b32 s{S_RDY}, 1, s{S_KQ}')
    a.salu(f's_mul_i32 s{S_T0}, s{S_B}, {144*1152}')
    a.salu(f's_mul_i32 s{S_T1}, s{S_NQ}, 288')
    a.salu(f's_add_u32 s{S_T0}, s{S_T0}, s{S_T1}')
    a.salu(f's_sub_u32 s{S_T2}, {2304*1152}, s{S_T0}')
    srd(S_OUT, 14, 15, f's{S_T0}', f's{S_T2}')
    a.valu(f'v_mul_u32_u24 v{T+1}, 1152, v2')
    a.valu(f'v_lshl_add_u32 v{T+1}, v3, 3, v{T+1}')
    a.salu(f's_lshl_b32 s{S_T0}, s{S_W4}, 10')
    a.valu(f'v_add_u32 v{T+2}, s{S_T0}, v{VL}')
    NSL = 6; SV = 92
    a.salu(f's_mov_b32 s{S_SO}, s{S_TAG}')
    a.salu(f's_mul_i32 s{S_EX}, s{S_KQ}, 20')
    a.salu(f's_min_u32 s{S_T0}, s{S_KQ}, 1')
    a.salu(f's_add_u32 s{S_EX}, s{S_EX}, s{S_T0}')
    a.salu(f's_add_u32 s{S_EX}, s{S_EX}, s{S_W4}')
    a.salu(f's_add_u32 s{S_LD}, s{S_KQ}, s{S_W4}')
    for m in range(NSL):
        a.salu(f's_add_u32 s{S_T0}, s{S_EX}, {4*m}')
        a.salu(f's_mul_i32 s{S_T1}, s{S_T0}, 57')
        a.salu(f's_lshr_b32 s{S_T1}, s{S_T1}, 9')
        a.salu(f's_mul_i32 s{S_T2}, s{S_T1}, 9')
        a.salu(f's_sub_u32 s{S_T2}, s{S_T0}, s{S_T2}')
        a.salu(f's_mul_i32 s{SV+m}, s{S_T1}, {16*1152}')
        a.salu(f's_lshl_b32 s{S_T0}, s{S_T2}, 5')
        a.salu(f's_add_u32 s{SV+m}, s{SV+m}, s{S_T0}')
        if m == NSL - 1:
            a.salu(f's_cmp_lg_u32 s{S_LD}, 0')
            a.salu(f's_cselect_b32 s{SV+m}, 0x10000000, s{SV+m}')
    a.ctl('s_barrier')
    for m in range(NSL): a.ds_read('ds_read_b128', 8+4*m, 4, T+2, m*4096)
    a.label('L_t_rp')
    a.vmem(f'buffer_load_dword v{VP}, v{VFL}, s[{S_PW}:{S_PW+3}], 0 offen sc1')
    a.wait(vm=0)
    a.valu(f'v_cmp_eq_u32 vcc, s{S_SO}, v{VP}')
    a.ctl('s_nop 1')
    a.raw(f'  s_or_b32 s{S_T0}, s{S_RDY}, vcc_lo')
    a.salu(f's_and_b32 s{S_T0}, s{S_T0}, 15')
    a.salu(f's_cmp_eq_u32 s{S_T0}, 15')
    a.ctl('s_cbranch_scc1 L_t_rg')
    wd()
    a.ctl('s_sleep 1')
    a.ctl('s_branch L_t_rp')
    a.label('L_t_rg')
    stamp(VD2, 16)
    for sidx in range(1, 4):
        a.salu(f's_add_u32 s{S_T0}, s{S_KQ}, {sidx}')
        a.salu(f's_and_b32 s{S_T0}, s{S_T0}, 3')
        a.salu(f's_lshl_b32 s{S_T1}, s{S_KQ}, 2')
        a.salu(f's_add_u32 s{S_T0}, s{S_T0}, s{S_T1}')
        a.salu(f's_mul_i32 s{S_TK}, s{S_T0}, {SLOT}')
        for m in range(NSL):
            a.salu(f's_add_u32 s{S_T0}, s{S_TK}, {m*4096}')
            if m == NSL - 1:
                a.salu(f's_and_b32 s{S_T1}, s{SV+m}, 0x10000000')
                a.salu(f's_or_b32 s{S_T0}, s{S_T0}, s{S_T1}')
            d = 40 + ((sidx-1)*NSL + m)*4
            a.vmem(f'buffer_load_dwordx4 v[{d}:{d+3}], v{T+2}, s[{S_PO}:{S_PO+3}], s{S_T0} offen sc1')
    a.wait(vm=0, lgkm=0)
    for m in range(NSL):
        for sidx in range(3):
            d = 40 + (sidx*NSL + m)*4
            for r in range(0, 4, 2):
                a.valu(f'v_pk_add_f32 v[{8+4*m+r}:{8+4*m+r+1}], v[{8+4*m+r}:{8+4*m+r+1}], v[{d+r}:{d+r+1}]')
        a.valu(f'v_cvt_pk_bf16_f32 v{130+2*m}, v{8+4*m}, v{8+4*m+1}')
        a.valu(f'v_cvt_pk_bf16_f32 v{131+2*m}, v{8+4*m+2}, v{8+4*m+3}')
        a.vmem(f'buffer_store_dwordx2 v[{130+2*m}:{131+2*m}], v{T+1}, s[{S_OUT}:{S_OUT+3}], s{SV+m} offen')
```

```python
import sys, math
from asmlib import *

NS = 6
QBUF = 51200
Q9X = 153600
CSCALE = math.log2(math.e) / math.sqrt(128.0)
import struct
def f2u(x): return struct.unpack('<I', struct.pack('<f', x))[0]

S_X, S_WQ, S_K, S_V, S_O = 20, 24, 28, 32, 36
S_RET = 40
S_W, S_W4, S_G, S_STEP, S_GOFS, S_T, S_FLOOR, S_END = 42, 43, 44, 45, 46, 47, 48, 49
S_M, S_T0, S_T1, S_T2, S_B, S_H, S_WQM, S_XM, S_C = 50, 51, 52, 53, 54, 55, 56, 57, 58
V_O = [8, 40, 72]
V_L = [80, 84, 88]
V_NM = [92, 96, 100]
V_ONES = 104
V_Q = [108, 124, 140]
V_KV = 156
V_S = [188, 196, 204]
V_AK = 212
V_AV = 216
V_DK, V_DV = 224, 225
V_T = 226
NV1 = 252

def k1(a, kv_flags=' nt', w_flags='', o_flags='', diag=False):
    name = 'attn_kernel'
    VD0, VD1, VD2 = 248, 249, 250
    def stamp(vreg, lane):
        if not diag: return
        a.raw('  s_memtime s[70:71]')
        a.wait(lgkm=0)
        if isinstance(lane, int):
            a.raw(f'  v_writelane_b32 v{vreg}, s70, {lane}')
        else:
            a.raw(f'  s_and_b32 m0, {lane}, 63')
            a.raw(f'  s_nop 0')
            a.raw(f'  v_writelane_b32 v{vreg}, s70, m0')
    a.raw(f'.globl {name}\n.p2align 8\n.type {name},@function\n{name}:')
    a.salu('s_cmp_ge_u32 s2, 256')
    a.ctl('s_cbranch_scc1 L_k1_end')
    a.raw('  s_load_dwordx16 s[4:19], s[0:1], 0')
    a.valu('v_lshrrev_b32 v1, 6, v0')
    a.valu('v_and_b32 v0, 63, v0')
    a.valu(f'v_readfirstlane_b32 s{S_W}, v1')
    a.salu(f's_and_b32 s{S_W4}, s{S_W}, 3')
    a.salu(f's_lshr_b32 s{S_G}, s{S_W}, 2')
    a.salu(f's_and_b32 s{S_T0}, s2, 1')
    a.salu(f's_lshl_b32 s{S_T0}, s{S_T0}, 3')
    a.salu(f's_bfe_u32 s{S_T1}, s2, 0x30003')
    a.salu(f's_add_u32 s{S_B}, s{S_T0}, s{S_T1}')
    a.salu(f's_bfe_u32 s{S_T0}, s2, 0x20001')
    a.salu(f's_lshl_b32 s{S_T0}, s{S_T0}, 2')
    a.salu(f's_lshr_b32 s{S_T1}, s2, 6')
    a.salu(f's_add_u32 s{S_T0}, s{S_T0}, s{S_T1}')
    a.salu(f's_lshl_b32 s{S_T2}, s{S_T0}, 1')
    a.salu(f's_add_u32 s{S_H}, s{S_T2}, s{S_G}')
    a.valu('v_and_b32 v2, 15, v0')
    a.valu('v_lshrrev_b32 v3, 4, v0')
    a.raw('  s_waitcnt lgkmcnt(0)')
    if diag:
        for r in (VD0, VD1, VD2): a.valu(f'v_mov_b32 v{r}, 0')
        a.raw('  s_memrealtime s[74:75]')
        stamp(VD2, 0)
        a.raw(f'  v_writelane_b32 v{VD2}, s74, 30')
    a.salu(f's_mul_i32 s{S_T0}, s{S_B}, 165888')
    a.salu(f's_add_u32 s{S_X}, s4, s{S_T0}')
    a.salu(f's_addc_u32 s{S_X+1}, s5, 0')
    a.salu(f's_mov_b32 s{S_X+2}, 165888')
    a.salu(f's_mov_b32 s{S_X+3}, 0x20000')
    a.salu(f's_lshl_b32 s{S_T0}, s{S_H}, 8')
    a.salu(f's_add_u32 s{S_WQ}, s10, s{S_T0}')
    a.salu(f's_addc_u32 s{S_WQ+1}, s11, 0')
    a.salu(f's_sub_u32 s{S_WQ+2}, {576*8192}, s{S_T0}')
    a.salu(f's_mov_b32 s{S_WQ+3}, 0x20000')
    a.salu(f's_lshl_b32 s{S_T0}, s{S_B}, 5')
    a.salu(f's_add_u32 s{S_T0}, s{S_T0}, s{S_T2}')
    a.salu(f's_lshr_b32 s{S_T1}, s{S_T0}, 14')
    a.salu(f's_lshl_b32 s{S_T0}, s{S_T0}, 18')
    a.salu(f's_add_u32 s{S_K}, s6, s{S_T0}')
    a.salu(f's_addc_u32 s{S_K+1}, s7, s{S_T1}')
    a.salu(f's_mov_b32 s{S_K+2}, 524288')
    a.salu(f's_mov_b32 s{S_K+3}, 0x20000')
    a.salu(f's_add_u32 s{S_V}, s8, s{S_T0}')
    a.salu(f's_addc_u32 s{S_V+1}, s9, s{S_T1}')
    a.salu(f's_mov_b32 s{S_V+2}, 524288')
    a.salu(f's_mov_b32 s{S_V+3}, 0x20000')
    a.salu(f's_mul_i32 s{S_T0}, s{S_B}, {9*131072}')
    a.salu(f's_lshl_b32 s{S_T1}, s{S_H}, 12')
    a.salu(f's_add_u32 s{S_T0}, s{S_T0}, s{S_T1}')
    a.salu(f's_add_u32 s{S_O}, s18, s{S_T0}')
    a.salu(f's_addc_u32 s{S_O+1}, s19, 0')
    a.salu(f's_sub_u32 s{S_O+2}, {9*131072}, s{S_T1}')
    a.salu(f's_mov_b32 s{S_O+3}, 0x20000')

    VW0, VW1, VX0, VX1, VX9 = 238, 239, 240, 241, 242
    T = V_T
    a.valu(f'v_lshlrev_b32 v{T}, 1, v3')
    a.valu(f'v_xor_b32 v{T}, v{T}, v2')
    a.valu(f'v_lshlrev_b32 v{T}, 4, v{T}')
    a.valu(f'v_lshl_add_u32 v{VW0}, v3, 13, v{T}')
    a.valu(f'v_xor_b32 v{VW1}, 128, v{VW0}')
    a.valu(f'v_lshrrev_b32 v{T}, 3, v0')
    a.valu(f'v_mul_u32_u24 v{T}, 1152, v{T}')
    a.valu(f'v_and_b32 v{T+1}, 7, v0')
    a.valu(f'v_xor_b32 v{T+1}, v{T+1}, v3')
    a.valu(f'v_lshl_add_u32 v{VX0}, v{T+1}, 4, v{T}')
    a.valu(f'v_xor_b32 v{T+1}, 4, v{T+1}')
    a.valu(f'v_lshl_add_u32 v{VX1}, v{T+1}, 4, v{T}')
    a.valu(f'v_lshrrev_b32 v{T}, 5, v0')
    a.salu(f's_lshl_b32 s{S_T0}, s{S_W}, 1')
    a.salu(f's_add_u32 s{S_T0}, s{S_T0}, 128')
    a.valu(f'v_add_u32 v{T}, s{S_T0}, v{T}')
    a.valu(f'v_mul_u32_u24 v{T}, 1152, v{T}')
    a.valu(f'v_bfe_u32 v{T+1}, v0, 2, 3')
    a.valu(f'v_xor_b32 v{T+1}, s{S_W}, v{T+1}')
    a.valu(f'v_lshl_add_u32 v{T}, v{T+1}, 4, v{T}')
    a.valu(f'v_and_b32 v{T+1}, 3, v0')
    a.valu(f'v_lshl_add_u32 v{VX9}, v{T+1}, 2, v{T}')
    a.salu(f's_lshl_b32 s{S_WQM}, s{S_G}, 14')
    a.salu(f's_lshl_b32 s{S_T0}, s{S_W4}, 12')
    a.salu(f's_add_u32 s{S_WQM}, s{S_WQM}, s{S_T0}')
    a.salu(f's_add_u32 s{S_WQM}, s{S_WQM}, 18432')
    a.salu(f's_lshl_b32 s{S_XM}, s{S_W}, 11')
    S_WQS, S_XS, S_X9M = 59, 60, 61
    a.salu(f's_lshl_b32 s{S_WQS}, s{S_W4}, 17')
    a.salu(f's_mul_i32 s{S_XS}, s{S_W}, {16*1152}')
    a.salu(f's_lshl_b32 s{S_X9M}, s{S_W}, 8')

    def qp_issue(n):
        buf = (n % 3) * QBUF
        for jj in range(4):
            a.salu(f's_add_u32 m0, s{S_WQM}, {buf + jj*1024}')
            a.salu(f's_add_u32 s{S_T0}, s{S_WQS}, {(n*64 + jj*4)*8192}')
            a.vmem(f'buffer_load_dwordx4 v{VW0 if jj < 2 else VW1}, s[{S_WQ}:{S_WQ+3}], s{S_T0} offen{w_flags} lds')
        for jj in range(2):
            a.salu(f's_add_u32 m0, s{S_XM}, {buf + jj*1024}')
            a.salu(f's_add_u32 s{S_T0}, s{S_XS}, {jj*8*1152 + n*128}')
            a.vmem(f'buffer_load_dwordx4 v{VX0 if jj == 0 else VX1}, s[{S_X}:{S_X+3}], s{S_T0} offen{w_flags} lds')
        a.salu(f's_add_u32 m0, s{S_X9M}, {buf + 16384}')
        a.salu(f's_mov_b32 s{S_T0}, {n*128}')
        a.vmem(f'buffer_load_dword v{VX9}, s[{S_X}:{S_X+3}], s{S_T0} offen{w_flags} lds')
    for n in range(3): qp_issue(n)

    a.salu(f's_lshl_b32 s{S_T0}, s{S_W4}, 2')
    a.valu(f'v_add_u32 v{T}, s{S_T0}, v3')
    a.valu(f'v_xor_b32 v{T+1}, v{T}, v2')
    a.valu(f'v_lshlrev_b32 v{T+1}, 4, v{T+1}')
    a.valu(f'v_lshl_add_u32 v{V_DK}, v{T}, 8, v{T+1}')
    a.valu(f'v_and_b32 v{T+1}, 7, v{T}')
    a.valu(f'v_lshlrev_b32 v{T+1}, 1, v{T+1}')
    a.valu(f'v_xor_b32 v{T+1}, v{T+1}, v2')
    a.valu(f'v_lshlrev_b32 v{T+1}, 4, v{T+1}')
    a.valu(f'v_lshl_add_u32 v{V_DV}, v{T}, 8, v{T+1}')
    a.salu(f's_lshl_b32 s{S_M}, s{S_W4}, 10')
    a.salu(f's_mov_b32 s{S_GOFS}, 0')

    def kv_issue_list(slot):
        L = []
        def mk(off, srd, vreg, hi):
            def f():
                a.salu(f's_add_u32 m0, s{S_M}, {slot*16384 + off}')
                if hi:
                    a.salu(f's_add_u32 s{S_T0}, s{S_GOFS}, 4096')
                    so = S_T0
                else:
                    so = S_GOFS
                a.vmem(f'buffer_load_dwordx4 v{vreg}, s[{srd}:{srd+3}], s{so} offen{kv_flags} lds')
            return f
        L.append(mk(0, S_K, V_DK, False)); L.append(mk(4096, S_K, V_DK, True))
        L.append(mk(8192, S_V, V_DV, False)); L.append(mk(12288, S_V, V_DV, True))
        L.append(lambda: a.salu(f's_add_u32 s{S_GOFS}, s{S_GOFS}, 8192'))
        return L

    VXA = [226+4, 226+5]
    VXN = [226+6, 226+7]
    VWA = V_AV
    a.valu(f'v_lshrrev_b32 v{T}, 1, v2')
    a.valu(f'v_xor_b32 v{T}, v{T}, v3')
    a.valu(f'v_lshlrev_b32 v{T}, 4, v{T}')
    a.valu(f'v_lshl_add_u32 v{T}, v2, 7, v{T}')
    a.salu(f's_lshl_b32 s{S_T0}, s{S_W4}, 12')
    a.valu(f'v_add_u32 v{VXA[0]}, s{S_T0}, v{T}')
    a.valu(f'v_xor_b32 v{VXA[1]}, 64, v{VXA[0]}')
    a.valu(f'v_add_u32 v{VXN[0]}, 16384, v{T}')
    a.valu(f'v_xor_b32 v{VXN[1]}, 64, v{VXN[0]}')
    a.valu(f'v_lshrrev_b32 v{T}, 2, v2')
    a.valu(f'v_lshl_add_u32 v{T+1}, v3, 3, v{T}')
    a.valu(f'v_lshlrev_b32 v{T+1}, 8, v{T+1}')
    a.valu(f'v_and_b32 v{T+2}, 3, v0')
    a.valu(f'v_lshl_add_u32 v{T+1}, v{T+2}, 3, v{T+1}')
    a.salu(f's_lshl_b32 s{S_T0}, s{S_G}, 14')
    a.salu(f's_add_u32 s{S_T0}, s{S_T0}, 18432')
    a.valu(f'v_add_u32 v{T+1}, s{S_T0}, v{T+1}')
    a.valu(f'v_and_b32 v{T+2}, 1, v3')
    a.valu(f'v_lshl_add_u32 v{T}, v{T+2}, 2, v{T}')
    for tau in range(8):
        a.salu(f's_lshl_b32 s{S_T0}, s{S_W4}, 1')
        a.salu(f's_add_u32 s{S_T0}, s{S_T0}, {tau}')
        a.salu(f's_and_b32 s{S_T0}, s{S_T0}, 7')
        a.valu(f'v_xor_b32 v{T+2}, s{S_T0}, v{T}')
        a.valu(f'v_lshl_add_u32 v{VWA+tau}, v{T+2}, 5, v{T+1}')
    for r in range(8, 80): a.valu(f'v_mov_b32 v{r}, 0')

    WF = [156, 108]
    XF = [188, 200]
    def qp_reads(sp):
        L = []
        wf, xf = WF[sp], XF[sp]
        L.append(lambda: a.ds_read('ds_read_b128', xf, 4, VXA[sp], 0))
        for tau in range(8):
            for rd in range(2):
                L.append(lambda tau=tau, rd=rd: a.ds_read('ds_read_b64_tr_b16', wf + 4*tau + 2*rd, 2, VWA+tau, sp*8192 + rd*1024))
            if tau == 0:
                L.append(lambda: a.ds_read('ds_read_b128', xf+4, 4, VXA[sp], 2048))
                L.append(lambda: a.ds_read('ds_read_b128', xf+8, 4, VXN[sp], 0))
        return L
    def qp_mfmas(sp):
        L = []
        wf, xf = WF[sp], XF[sp]
        for tau in range(8):
            L.append(lambda tau=tau: a.mfma(V_O[0]+4*tau, wf+4*tau, xf, V_O[0]+4*tau))
            L.append(lambda tau=tau: a.mfma(V_O[1]+4*tau, wf+4*tau, xf+4, V_O[1]+4*tau))
            if tau < 2:
                L.append(lambda tau=tau: a.mfma(V_O[2]+4*tau, wf+4*tau, xf+8, V_O[2]+4*tau))
        return L
    for n in range(9):
        a.comment(f'---- qproj chunk {n}')
        stamp(VD2, 1+2*n)
        if n == 8:
            a.salu(f's_cmp_eq_u32 s{S_G}, 0')
            a.ctl('s_cbranch_scc1 L_qp8x')
            a.wait(vm=0)
            a.label('L_qp8x')
            a.wait(vm=12, lgkm=0)
        else:
            a.wait(vm=14 if n == 0 else 7, lgkm=0)
        a.ctl('s_barrier')
        stamp(VD2, 2+2*n)
        for f in qp_reads(0): f()
        if 1 <= n <= 6: qp_issue(n + 2)
        if n in (7, 8):
            a.salu(f's_cmp_lg_u32 s{S_G}, 0')
            a.ctl(f's_cbranch_scc1 L_qpkv{n}')
            for slot in ((0, 1, 2) if n == 7 else (3, 4)):
                for f in kv_issue_list(slot): f()
            a.label(f'L_qpkv{n}')
        for f in interleave(qp_mfmas(0), qp_reads(1)): f()
        delta = QBUF if n % 3 != 2 else -2*QBUF
        adds = []
        if n < 8:
            for r in VXA + VXN + [VWA+i for i in range(8)]:
                adds.append(lambda r=r: a.valu(f'v_add_u32 v{r}, {delta & 0xffffffff}, v{r}'))
        m1 = qp_mfmas(1)
        for f in interleave(m1, adds): f()
    a.salu(f's_mov_b32 s{S_C}, {f2u(CSCALE)}')
    a.ctl('s_nop 7')
    def conv(accbase, qbase, nsig):
        for r in range(8*nsig): a.valu(f'v_mul_f32 v{accbase+r}, s{S_C}, v{accbase+r}')
        for sg in range(nsig):
            for j in range(4):
                a.valu(f'v_cvt_pk_bf16_f32 v{qbase+4*sg+j}, v{accbase+8*sg+2*j}, v{accbase+8*sg+2*j+1}')
        for sg in range(nsig):
            q = qbase + 4*sg
            a.valu(f'v_permlane32_swap_b32 v{q}, v{q+2}')
            a.valu(f'v_permlane32_swap_b32 v{q+1}, v{q+3}')
        for sg in range(nsig):
            q = qbase + 4*sg
            a.valu(f'v_permlane16_swap_b32 v{q}, v{q+2}')
            a.valu(f'v_permlane16_swap_b32 v{q+1}, v{q+3}')
    conv(V_O[2], V_Q[2], 1)
    a.salu(f's_lshl_b32 s{S_T0}, s{S_G}, 12')
    a.salu(f's_add_u32 s{S_T0}, s{S_T0}, {Q9X}')
    a.valu(f'v_lshlrev_b32 v{T}, 4, v0')
    a.valu(f'v_add_u32 v{T}, s{S_T0}, v{T}')
    a.valu(f'v_add_u32 v{T+1}, s{S_M}, v{T}')
    a.ds_write('ds_write_b128', T+1, V_Q[2], 4, 0)
    conv(V_O[0], V_Q[0], 4)
    conv(V_O[1], V_Q[1], 4)
    a.wait(lgkm=0)
    a.ctl('s_barrier')
    for sg in range(1, 4):
        a.salu(f's_add_u32 s{S_T0}, s{S_W4}, {sg}')
        a.salu(f's_and_b32 s{S_T0}, s{S_T0}, 3')
        a.salu(f's_lshl_b32 s{S_T0}, s{S_T0}, 10')
        a.valu(f'v_add_u32 v{T+1+sg}, s{S_T0}, v{T}')
        a.ds_read('ds_read_b128', V_Q[2]+4*sg, 4, T+1+sg, 0)
    for sg in range(4):
        a.salu(f's_add_u32 s{S_T0}, s{S_W4}, {sg}')
        a.salu(f's_and_b32 s{S_T0}, s{S_T0}, 3')
        a.salu(f's_lshl_b32 s{S_T0}, s{S_T0}, 2')
        a.valu(f'v_add_u32 v{T+6}, s{S_T0}, v3')
        a.valu(f'v_xor_b32 v{T+6}, v{T+6}, v2')
        a.valu(f'v_lshlrev_b32 v{T+6}, 4, v{T+6}')
        a.valu(f'v_lshl_add_u32 v{V_AK+sg}, v2, 8, v{T+6}')
    a.valu(f'v_lshrrev_b32 v{T+6}, 2, v2')
    a.valu(f'v_lshl_add_u32 v{T+6}, v3, 2, v{T+6}')
    a.valu(f'v_and_b32 v{T+7}, 3, v0')
    a.valu(f'v_lshlrev_b32 v{T+7}, 3, v{T+7}')
    a.valu(f'v_lshl_add_u32 v{T+7}, v{T+6}, 8, v{T+7}')
    a.valu(f'v_add_u32 v{T+7}, 8192, v{T+7}')
    a.valu(f'v_and_b32 v{T+6}, 7, v{T+6}')
    for tau in range(8):
        a.salu(f's_lshl_b32 s{S_T0}, s{S_W4}, 1')
        a.salu(f's_add_u32 s{S_T0}, s{S_T0}, {tau}')
        a.salu(f's_and_b32 s{S_T0}, s{S_T0}, 7')
        a.valu(f'v_xor_b32 v{T+8}, s{S_T0}, v{T+6}')
        a.valu(f'v_lshl_add_u32 v{V_AV+tau}, v{T+8}, 5, v{T+7}')
    for r in range(8, 104): a.valu(f'v_mov_b32 v{r}, 0')
    for r in range(4): a.valu(f'v_mov_b32 v{V_ONES+r}, 0x3f803f80')
    a.salu(f's_mov_b32 s{S_T}, 0xff800000')
    a.salu(f's_mov_b32 s{S_FLOOR}, 0xff800000')
    a.wait(lgkm=0)
    a.salu(f's_cmp_eq_u32 s{S_G}, 0')
    a.ctl('s_cbranch_scc1 L_xstart')
    a.salu(f's_mov_b32 s{S_STEP}, 0')
    a.label('L_yidle')
    a.ctl('s_barrier')
    a.salu(f's_add_u32 s{S_STEP}, s{S_STEP}, 1')
    a.salu(f's_cmp_lt_u32 s{S_STEP}, 32')
    a.ctl('s_cbranch_scc1 L_yidle')
    a.salu(f's_mov_b32 s{S_END}, 64')
    a.salu(f's_mov_b32 s{S_GOFS}, {(32+NS-1)*8192}')
    ypos = 32 % NS
    if ypos >= 4 or ypos == 0:
        raise Exception('adjust address base for y entry')
    a.ctl(f's_branch L_body{ypos}')
    a.label('L_xstart')
    a.salu(f's_mov_b32 s{S_STEP}, 0')
    a.salu(f's_mov_b32 s{S_END}, 32')
    for r in range(12): a.valu(f'v_add_u32 v{V_AK+r}, 0x10000, v{V_AK+r}')

    stubs = []
    for p in range(NS):
        a.label(f'L_body{p}')
        stamp(VD0, f's{S_STEP}')
        a.wait(vm=4*(NS-2), lgkm=0)
        a.ctl('s_barrier')
        stamp(VD1, f's{S_STEP}')
        if p == 0:
            for r in range(4): a.valu(f'v_add_u32 v{V_AK+r}, 0xffff0000, v{V_AK+r}')
        if p == 4:
            for r in range(4): a.valu(f'v_add_u32 v{V_AK+r}, 0x10000, v{V_AK+r}')
        so = (p % 4) * 16384
        for kt in range(2):
            for sg in range(4):
                a.ds_read('ds_read_b128', V_KV + 4*(kt*4+sg), 4, V_AK+sg, so + kt*4096)
        M = []
        for t in range(3):
            for kt in range(2):
                for sg in range(4):
                    d = V_S[t] + 4*kt
                    M.append(lambda t=t, kt=kt, sg=sg, d=d: a.mfma(d, V_KV+4*(kt*4+sg), V_Q[t]+4*sg, V_NM[t] if sg == 0 else d))
        for t in range(3):
            for tau in range(8 if t < 2 else 2):
                M.append(lambda t=t, tau=tau: a.mfma(V_O[t]+4*tau, V_KV+4*tau, V_S[t], V_O[t]+4*tau))
            M.append(lambda t=t: a.mfma(V_L[t], V_ONES, V_S[t], V_L[t]))
        gaps = [[] for _ in M]
        def place(items, g0, g1):
            n = len(items); span = g1 - g0 + 1
            for i, f in enumerate(items):
                gaps[g0 + i * span // n].append(f)
        def sm(t):
            s = V_S[t]; mx = V_T + t
            L = []
            L.append(lambda: a.valu(f'v_max3_f32 v{mx}, v{s}, v{s+1}, v{s+2}'))
            L.append(lambda: a.valu(f'v_max3_f32 v{mx}, v{mx}, v{s+3}, v{s+4}'))
            L.append(lambda: a.valu(f'v_max3_f32 v{mx}, v{mx}, v{s+5}, v{s+6}'))
            def chk():
                a.valu(f'v_max_f32 v{mx}, v{mx}, v{s+7}')
                a.valu(f'v_cmp_lt_f32 vcc, s{S_T}, v{mx}')
                a.ctl(f's_cbranch_vccnz L_stub{p}_{t}')
                a.label(f'L_back{p}_{t}')
                stubs.append((p, t))
            L.append(chk)
            for j in range(4):
                L.append(lambda j=j: a.valu(f'v_exp_f32 v{s+2*j}, v{s+2*j}'))
                L.append(lambda j=j: a.valu(f'v_exp_f32 v{s+2*j+1}, v{s+2*j+1}'))
                if j > 0:
                    L.append(lambda j=j: a.valu(f'v_cvt_pk_bf16_f32 v{s+j-1}, v{s+2*j-2}, v{s+2*j-1}'))
            L.append(lambda: a.valu(f'v_cvt_pk_bf16_f32 v{s+3}, v{s+6}, v{s+7}'))
            return L
        fill0 = kv_issue_list((p + NS - 1) % NS)
        if p in (0, 4):
            c = '0xffff0000' if p == 0 else '0x10000'
            fill0 += [lambda r=r, c=c: a.valu(f'v_add_u32 v{V_AV+r}, {c}, v{V_AV+r}') for r in range(8)]
        place(fill0, 0, 9)
        place(sm(0), 11, 20)
        for tau in range(8):
            for rd in range(2):
                gaps[16+tau].append(lambda tau=tau, rd=rd: a.ds_read('ds_read_b64_tr_b16', V_KV+4*tau+2*rd, 2, V_AV+tau, so + rd*4096))
        place(sm(1), 21, 31)
        place(sm(2), 32, 40)
        gaps[42].append(lambda: a.salu(f's_add_u32 s{S_STEP}, s{S_STEP}, 1'))
        gaps[42].append(lambda: a.salu(f's_mov_b32 s{S_T}, 0x41000000'))
        gaps[43].append(lambda: a.salu(f's_mov_b32 s{S_FLOOR}, 0'))
        gaps[43].append(lambda: a.salu(f's_cmp_eq_u32 s{S_STEP}, s{S_END}'))
        for i, m in enumerate(M):
            m()
            for f in gaps[i]: f()
        a.ctl('s_cbranch_scc1 L_attn_done')
    a.ctl('s_branch L_body0')
    for (p, t) in stubs:
        a.label(f'L_stub{p}_{t}')
        a.ctl(f's_call_b64 s[{S_RET}:{S_RET+1}], L_rare{t}')
        a.ctl(f's_branch L_back{p}_{t}')
    for t in range(3):
        a.label(f'L_rare{t}')
        mx = V_T + t; t1 = V_T + 4; t2 = V_T + 5
        a.ctl('s_nop 7')
        a.valu(f'v_mov_b32 v{t1}, v{mx}')
        a.valu(f'v_permlane32_swap_b32 v{mx}, v{t1}')
        a.valu(f'v_max_f32 v{mx}, v{mx}, v{t1}')
        a.valu(f'v_mov_b32 v{t1}, v{mx}')
        a.valu(f'v_permlane16_swap_b32 v{mx}, v{t1}')
        a.valu(f'v_max_f32 v{mx}, v{mx}, v{t1}')
        a.valu(f'v_max_f32 v{mx}, s{S_FLOOR}, v{mx}')
        a.valu(f'v_max_f32 v{t2}, 0, v{mx}')
        a.valu(f'v_exp_f32 v{t2}, -v{t2}')
        for r in range(4): a.valu(f'v_sub_f32 v{V_NM[t]+r}, v{V_NM[t]+r}, v{mx}')
        for r in range(8): a.valu(f'v_sub_f32 v{V_S[t]+r}, v{V_S[t]+r}, v{mx}')
        for r in range(32 if t < 2 else 8): a.valu(f'v_mul_f32 v{V_O[t]+r}, v{V_O[t]+r}, v{t2}')
        for r in range(4): a.valu(f'v_mul_f32 v{V_L[t]+r}, v{V_L[t]+r}, v{t2}')
        a.ctl('s_nop 1')
        a.ctl(f's_setpc_b64 s[{S_RET}:{S_RET+1}]')

    a.label('L_attn_done')
    stamp(VD2, 20)
    a.salu(f's_cmp_lg_u32 s{S_G}, 0')
    a.ctl('s_cbranch_scc1 L_epi')
    a.wait(vm=4*(NS-2), lgkm=0)
    a.ctl('s_barrier')
    a.label('L_epi')
    a.ctl('s_nop 7')
    a.valu(f'v_lshlrev_b32 v{T+6}, 4, v0')
    nst = 0
    for t in range(3):
        a.valu(f'v_rcp_f32 v{T+t}, v{V_L[t]}')
    for t in range(3):
        nsig = 4 if t < 2 else 1
        for r in range(8*nsig): a.valu(f'v_mul_f32 v{V_O[t]+r}, v{V_O[t]+r}, v{T+t}')
        for sg in range(nsig):
            dst = V_Q[t] + 4*sg
            for j in range(4):
                a.valu(f'v_cvt_pk_bf16_f32 v{dst+j}, v{V_O[t]+8*sg+2*j}, v{V_O[t]+8*sg+2*j+1}')
            a.salu(f's_add_u32 s{S_T0}, s{S_W4}, {sg}')
            a.salu(f's_and_b32 s{S_T0}, s{S_T0}, 3')
            a.salu(f's_lshl_b32 s{S_T0}, s{S_T0}, 10')
            if t < 2:
                a.salu(f's_lshl_b32 s{S_T1}, s{S_W4}, 18')
                a.salu(f's_add_u32 s{S_T0}, s{S_T0}, s{S_T1}')
                if t: a.salu(f's_add_u32 s{S_T0}, s{S_T0}, 131072')
            else:
                a.salu(f's_add_u32 s{S_T0}, s{S_T0}, {8*131072}')
            a.vmem(f'buffer_store_dwordx4 v[{dst}:{dst+3}], v{T+6}, s[{S_O}:{S_O+3}], s{S_T0} offen{o_flags}')
            nst += 1
    a.salu(f's_cmp_lg_u32 s{S_G}, 0')
    a.ctl('s_cbranch_scc1 L_k1_fin')
    for i in range(1, NS-1):
        a.wait(vm=4*(NS-2-i) + nst)
        a.ctl('s_barrier')
    a.label('L_k1_fin')
    if diag:
        a.wait(vm=0)
        stamp(VD2, 21)
        a.raw('  s_memrealtime s[74:75]')
        a.wait(lgkm=0)
        a.raw(f'  v_writelane_b32 v{VD2}, s74, 31')
        a.raw('  s_getreg_b32 s74, hwreg(HW_REG_HW_ID)')
        a.raw(f'  v_writelane_b32 v{VD2}, s74, 32')
        a.raw('  s_getreg_b32 s74, hwreg(HW_REG_XCC_ID)')
        a.raw(f'  v_writelane_b32 v{VD2}, s74, 33')
        a.salu('s_add_u32 s64, s18, 0x4000000'); a.salu('s_addc_u32 s65, s19, 0')
        a.salu('s_mov_b32 s66, 0x1000000'); a.salu('s_mov_b32 s67, 0x20000')
        a.salu(f's_lshl_b32 s72, s2, 3'); a.salu(f's_add_u32 s72, s72, s{S_W}'); a.salu('s_mul_i32 s72, s72, 768')
        a.valu(f'v_lshlrev_b32 v{T}, 2, v0')
        for k, r in enumerate((VD0, VD1, VD2)):
            a.vmem(f'buffer_store_dword v{r}, v{T}, s[64:67], s72 offen offset:{k*256}')
    a.label('L_k1_end')
    a.ctl('s_endpgm')
    return name

def k2(a, o_flags='', w_flags=''):
    name = 'oproj_kernel'
    D = 4
    a.raw(f'.globl {name}\n.p2align 8\n.type {name},@function\n{name}:')
    a.salu('s_cmp_ge_u32 s2, 216')
    a.ctl('s_cbranch_scc1 L_k2_end')
    a.raw('  s_load_dwordx8 s[12:19], s[0:1], 32')
    a.valu('v_lshrrev_b32 v1, 6, v0')
    a.valu('v_and_b32 v0, 63, v0')
    a.valu('v_readfirstlane_b32 s42, v1')
    a.salu('s_and_b32 s50, s2, 7')
    a.salu('s_lshr_b32 s51, s2, 3')
    a.salu('s_mul_i32 s52, s51, 57')
    a.salu('s_lshr_b32 s52, s52, 9')
    a.salu('s_mul_i32 s53, s52, 9')
    a.salu('s_sub_u32 s53, s51, s53')
    a.salu('s_mul_i32 s54, s50, 3')
    a.salu('s_add_u32 s54, s54, s52')
    a.valu('v_and_b32 v2, 15, v0')
    a.valu('v_lshrrev_b32 v3, 4, v0')
    a.raw('  s_waitcnt lgkmcnt(0)')
    a.salu(f's_mul_i32 s55, s54, {6*131072}')
    a.salu('s_add_u32 s20, s18, s55'); a.salu('s_addc_u32 s21, s19, 0')
    a.salu(f's_mov_b32 s22, {6*131072}'); a.salu('s_mov_b32 s23, 0x20000')
    a.salu('s_lshl_b32 s55, s53, 7')
    a.salu('s_add_u32 s24, s12, s55'); a.salu('s_addc_u32 s25, s13, 0')
    a.salu(f's_sub_u32 s26, {4096*1152}, s55'); a.salu('s_mov_b32 s27, 0x20000')
    a.salu(f's_mul_i32 s56, s54, {96*1152}')
    a.salu('s_add_u32 s56, s56, s55')
    a.salu('s_add_u32 s28, s14, s56'); a.salu('s_addc_u32 s29, s15, 0')
    a.salu(f's_sub_u32 s30, {2304*1152}, s56'); a.salu('s_mov_b32 s31, 0x20000')
    ACC = 8
    OF = 104
    WF = OF + D*24
    VO = 216
    VW = 222
    VA = 224
    T = 228
    for rb in range(6):
        a.valu(f'v_lshlrev_b32 v{VO+rb}, 4, v0')
        if rb: a.valu(f'v_add_u32 v{VO+rb}, {rb*131072}, v{VO+rb}')
    a.valu(f'v_lshrrev_b32 v{T}, 3, v0')
    a.valu(f'v_mul_u32_u24 v{T}, 1152, v{T}')
    a.valu(f'v_lshlrev_b32 v{T+1}, 1, v3')
    a.valu(f'v_and_b32 v{T+2}, 7, v0')
    a.valu(f'v_xor_b32 v{T+1}, v{T+1}, v{T+2}')
    a.valu(f'v_lshl_add_u32 v{VW}, v{T+1}, 4, v{T}')
    a.salu('s_lshl_b32 s44, s42, 10')
    a.salu(f's_mul_i32 s45, s42, {32*1152}')
    a.salu(f's_mul_i32 s46, s42, {D*4096}')
    def issue(e):
        for jj in range(4):
            a.salu(f's_add_u32 m0, s46, {e*4096 + jj*1024}')
            a.salu(f's_add_u32 s47, s45, {jj*8*1152}')
            a.vmem(f'buffer_load_dwordx4 v{VW}, s[24:27], s47 offen{w_flags} lds')
        for rb in range(6):
            a.vmem(f'buffer_load_dwordx4 v[{OF+e*24+rb*4}:{OF+e*24+rb*4+3}], v{VO+rb}, s[20:23], s44 offen{o_flags}')
        a.salu('s_add_u32 s44, s44, 4096')
        a.salu(f's_add_u32 s45, s45, {4*32*1152}')
    for e in range(D): issue(e)
    a.valu(f'v_lshrrev_b32 v{T}, 2, v2')
    a.valu(f'v_lshl_add_u32 v{T}, v3, 2, v{T}')
    a.valu(f'v_and_b32 v{T+1}, 3, v0')
    a.valu(f'v_lshlrev_b32 v{T+1}, 3, v{T+1}')
    a.valu(f'v_lshl_add_u32 v{T+1}, v{T}, 7, v{T+1}')
    a.valu(f'v_add_u32 v{T+1}, s46, v{T+1}')
    a.valu(f'v_bfe_u32 v{T}, v{T}, 1, 2')
    for ns in range(4):
        a.salu(f's_add_u32 s47, s42, {ns}')
        a.salu('s_and_b32 s47, s47, 3')
        a.valu(f'v_xor_b32 v{T+2}, s47, v{T}')
        a.valu(f'v_lshl_add_u32 v{VA+ns}, v{T+2}, 5, v{T+1}')
    for r in range(96): a.valu(f'v_mov_b32 v{ACC+r}, 0')
    def stage(e, vm, do_issue):
        a.wait(vm=vm)
        for ns in range(4):
            for rd in range(2):
                a.ds_read('ds_read_b64_tr_b16', WF+4*ns+2*rd, 2, VA+ns, e*4096 + rd*2048)
        for ns in range(4):
            for rb in range(6):
                a.mfma(ACC+(ns*6+rb)*4, WF+4*ns, OF+e*24+rb*4, ACC+(ns*6+rb)*4)
        if do_issue: issue(e)
    a.salu('s_mov_b32 s48, 0')
    a.label('L_k2loop')
    for e in range(D): stage(e, 10*(D-1), True)
    a.salu('s_add_u32 s48, s48, 1')
    a.salu(f's_cmp_lt_u32 s48, {32//D - 1}')
    a.ctl('s_cbranch_scc1 L_k2loop')
    for e in range(D): stage(e, 10*(D-1-e), False)
    a.wait(lgkm=0)
    a.ctl('s_barrier')
    a.ctl('s_nop 7')
    a.valu(f'v_lshlrev_b32 v{T}, 4, v0')
    for ns in range(1, 4):
        a.salu(f's_add_u32 s47, s42, {ns}')
        a.salu('s_and_b32 s47, s47, 3')
        a.salu(f's_mul_i32 s47, s47, {18*1024}')
        a.valu(f'v_add_u32 v{T+ns}, s47, v{T}')
        for rb in range(6):
            a.ds_write('ds_write_b128', T+ns, ACC+(ns*6+rb)*4, 4, ((ns-1)*6+rb)*1024)
    a.salu(f's_mul_i32 s47, s42, {18*1024}')
    a.valu(f'v_add_u32 v{T}, s47, v{T}')
    a.wait(lgkm=0)
    a.ctl('s_barrier')
    for k in range(3):
        for rb in range(6):
            a.ds_read('ds_read_b128', ACC+24+(k*6+rb)*4, 4, T, (k*6+rb)*1024)
    a.valu(f'v_mul_u32_u24 v{T+1}, 1152, v2')
    a.valu(f'v_lshl_add_u32 v{T+1}, v3, 3, v{T+1}')
    a.salu('s_lshl_b32 s47, s42, 5')
    a.valu(f'v_add_u32 v{T+1}, s47, v{T+1}')
    for rb in range(6):
        for k in range(3):
            for r in range(4):
                a.valu(f'v_add_f32 v{ACC+rb*4+r}, v{ACC+rb*4+r}, v{ACC+24+(k*6+rb)*4+r}')
        a.valu(f'v_cvt_pk_bf16_f32 v{OF+2*rb}, v{ACC+rb*4}, v{ACC+rb*4+1}')
        a.valu(f'v_cvt_pk_bf16_f32 v{OF+2*rb+1}, v{ACC+rb*4+2}, v{ACC+rb*4+3}')
        a.salu(f's_mov_b32 s47, {rb*16*1152}')
        a.vmem(f'buffer_store_dwordx2 v[{OF+2*rb}:{OF+2*rb+1}], v{T+1}, s[28:31], s47 offen')
    a.label('L_k2_end')
    a.ctl('s_endpgm')
    return name

def build(path, **kw):
    a = Asm()
    hdr = open('standalone__mha_block_cached__near_ridge.s.ref').read().split('; Override')[0]
    a.raw(hdr.rstrip())
    a.raw('; @launch kernel=attn_kernel grid=(256,1,1) block=(512,1,1) lds=163840')
    a.raw('; @launch kernel=oproj_kernel grid=(216,1,1) block=(256,1,1) lds=81920')
    a.raw('.amdgcn_target "amdgcn-amd-amdhsa--gfx950"\n.text')
    k1(a, **{k: v for k, v in kw.items() if k in ('kv_flags', 'w_flags', 'o_flags', 'diag')})
    a.lq = []
    k2(a)
    txt = a.text().replace('  ; @launch', '; @launch').replace('  ; Kernarg', '; Kernarg').lstrip()
    txt += kd('attn_kernel', NV1) + kd('oproj_kernel', 240)
    open(path, 'w').write(txt)
    print(path, 'nops inserted:', a.nnop, 'lines', txt.count('\n'))

if __name__ == '__main__':
    build('v2a.s')
    build('v2a_diag.s', diag=True)
```

```python
import sys, math, struct
from asmlib import *

CSCALE = math.log2(math.e) / math.sqrt(128.0)
def f2u(x): return struct.unpack('<I', struct.pack('<f', x))[0]
KNAME = 'standalone__mha_block_cached__near_ridge_kernel'

XB = [65536, 100352, 135168]; WB = [83968, 118784, 49152]
Q9X = 153600
QA = [65536, 83968]; QSB = 65536; QST = 17408
SYNC = 163584
F_LAND, F_CONS, F_QB, F_OA, F_OB, F_N9A, F_TAG, F_CLAIM, F_X0, F_RDY = [SYNC + o for o in (0, 16, 80, 84, 88, 92, 96, 112, 104, 116)]
F_QL, F_QC = SYNC + 144, SYNC + 56
F_PL, F_PC, F_RA = SYNC + 148, SYNC + 160, SYNC + 168
OST = 102400
F_OC = SYNC + 172
DROW = 163328
FLAG_OFF = 0x2000000
S_X, S_WQ, S_K, S_V, S_O = 20, 24, 28, 32, 36
S_RET = 40
S_W, S_W4, S_G, S_STEP, S_END = 42, 43, 44, 45, 46
S_TH = [48, 49]; S_FL = [50, 51]
S_T0, S_T1, S_T2, S_B, S_P2 = 52, 53, 54, 55, 56
S_A, S_A2, S_A3, S_A4, S_N, S_DX, S_DW = 57, 58, 59, 60, 61, 62, 63
S_C = 64
S_FLG = 68
S_PO = 76
S_PW = 80
S_OUT = 84
S_DBG = 88
S_WD = 99
S_KR = 67
S_QM, S_H1, S_H2, S_P1, S_P2q, S_P3, S_QW, S_QX, S_QR, S_QK, S_QLIM = 59, 60, 61, 62, 63, 92, 93, 94, 96, 97, 98
S_NQ, S_KQ, S_RO = 47, 3, 3
S_CH = 66
S_UNIT, S_TAG, S_RDY, S_CUR, S_NXT, S_KIND, S_PL = 92, 93, 94, 95, 96, 97, 98
V_O = [8, 40]; V_L = [72, 76]; V_NM = [80, 84]; V_ONES = 88
V_Q = [92, 108]; V_KF = 124; V_VF = 156; V_S = [188, 196]
V_AK = 204; V_AV = 208
V_MX = [218, 219]; V_R = [220, 221]
V_F, V_ST = 222, 223
V_Q9 = 224
V_H, V_CA, V_HA, V_FA = 240, 241, 242, 243
T = 244
NV = 256

def kernel(a, kv_flags=' nt', w_flags='', diag=False, with_p=True, prio=(2, 1, 3, 0), kv_ticks=(4, 5, 6), D=2, rot=True, pace=2, pw=None, of=' sc1', psleep=4, ost=' sc1', exp=None, tkw={}, kvt=7, qpf=True, qpace=(1, 2), qst=3, pq=1, qskip=99, wopf=False, krot=False, asleep=1, lsleep=1, touch=True, wot=True):
    PA, PN, PL, PG = prio
    VD0, VD1, VD2 = 253, 254, 255
    def stamp(vreg, lane):
        if not diag: return
        if diag == 'coarse' and vreg != VD2: return
        a.raw('  s_memtime s[72:73]')
        if diag == 'coarse' and isinstance(lane, int): a.raw('  s_memrealtime s[100:101]')
        a.wait(lgkm=0)
        if isinstance(lane, int):
            a.raw(f'  v_writelane_b32 v{vreg}, s72, {lane}')
            if diag == 'coarse': a.raw(f'  v_writelane_b32 v{VD0}, s100, {lane}')
        else:
            a.raw(f'  s_and_b32 m0, {lane}, 63')
            a.raw(f'  s_nop 0')
            a.raw(f'  v_writelane_b32 v{vreg}, s72, m0')
    def vconst(reg, val): a.valu(f'v_mov_b32 v{reg}, {val}')
    def lane0_addr(reg, addr):
        a.valu(f'v_lshlrev_b32 v{reg}, 2, v0')
        a.valu(f'v_add_u32 v{reg}, {DROW}, v{reg}')
        if addr is not None:
            if isinstance(addr, int):
                a.salu(f's_mov_b32 s{S_T1}, {addr}'); addr = f's{S_T1}'
            a.raw(f'  v_writelane_b32 v{reg}, {addr}, 0')
            a.ctl('s_nop 0')
    def wd():
        a.salu(f's_add_u32 s{S_WD}, s{S_WD}, 1')
        a.salu(f's_cmp_gt_u32 s{S_WD}, 0x40000')
        a.ctl('s_cbranch_scc1 L_end')
    def srd(base, lo, hi, off, nrec):
        if off is None:
            a.salu(f's_mov_b32 s{base}, s{lo}'); a.salu(f's_mov_b32 s{base+1}, s{hi}')
        else:
            a.salu(f's_add_u32 s{base}, s{lo}, {off}'); a.salu(f's_addc_u32 s{base+1}, s{hi}, 0')
        a.salu(f's_mov_b32 s{base+2}, {nrec}'); a.salu(f's_mov_b32 s{base+3}, 0x20000')

    a.raw(f'.globl {KNAME}\n.p2align 8\n.type {KNAME},@function\n{KNAME}:')
    a.salu('s_cmp_ge_u32 s2, 256')
    a.ctl('s_cbranch_scc1 L_end')
    a.raw('  s_load_dwordx16 s[4:19], s[0:1], 0')
    a.raw('  s_memrealtime s[74:75]')
    if diag: a.raw('  s_memtime s[72:73]')
    a.valu('v_lshrrev_b32 v1, 6, v0')
    a.valu('v_and_b32 v0, 63, v0')
    a.valu(f'v_readfirstlane_b32 s{S_W}, v1')
    a.valu('v_and_b32 v2, 15, v0')
    a.valu('v_lshrrev_b32 v3, 4, v0')
    a.salu(f's_mov_b32 s{S_WD}, 0')
    a.salu(f's_lshr_b32 s{S_NQ}, s2, 6')
    a.salu(f's_bfe_u32 s{S_KQ}, s2, 0x20001')
    a.salu(f's_mul_i32 s{S_KR}, s2, {krot if isinstance(krot, int) and krot > 1 else 11}')
    a.salu(f's_lshr_b32 s{S_T0}, s2, 5')
    a.salu(f's_add_u32 s{S_KR}, s{S_KR}, s{S_T0}')
    a.salu(f's_and_b32 s{S_W4}, s{S_W}, 3')
    a.salu(f's_lshr_b32 s{S_G}, s{S_W}, 2')
    a.salu(f's_and_b32 s{S_T0}, s2, 1')
    a.salu(f's_lshl_b32 s{S_T0}, s{S_T0}, 3')
    a.salu(f's_bfe_u32 s{S_T1}, s2, 0x30003')
    a.salu(f's_add_u32 s{S_B}, s{S_T0}, s{S_T1}')
    a.salu(f's_bfe_u32 s{S_T0}, s2, 0x20001')
    a.salu(f's_lshl_b32 s{S_T0}, s{S_T0}, 2')
    a.salu(f's_lshr_b32 s{S_T1}, s2, 6')
    a.salu(f's_add_u32 s{S_T0}, s{S_T0}, s{S_T1}')
    a.salu(f's_lshl_b32 s{S_P2}, s{S_T0}, 1')
    a.salu(f's_bfe_u32 s{S_T0}, s2, 0x30003')
    a.salu(f's_lshr_b32 s{S_T1}, s2, 6')
    a.salu(f's_lshl_b32 s{S_T1}, s{S_T1}, 1')
    a.salu(f's_add_u32 s{S_CH}, s{S_T0}, s{S_T1}')
    a.salu(f's_cmp_ge_u32 s{S_CH}, 9')
    a.salu(f's_cselect_b32 s{S_T0}, 9, 0')
    a.salu(f's_sub_u32 s{S_CH}, s{S_CH}, s{S_T0}')
    if not rot: a.salu(f's_mov_b32 s{S_CH}, 0')
    a.salu(f's_cmp_eq_u32 s{S_G}, 0')
    a.ctl('s_cbranch_scc1 L_x_pro')

    LK = 92
    def l_setup(ph2=False):
        for v in range(4):
            a.valu(f'v_add_u32 v{T}, {4*v}, v3')
            a.valu(f'v_xor_b32 v{T}, v{T}, v2')
            a.valu(f'v_lshlrev_b32 v{T}, 4, v{T}')
            a.valu(f'v_lshl_add_u32 v{LK+v}, v3, 8, v{T}')
        for v in range(2):
            a.valu(f'v_add_u32 v{T}, {4*v}, v3')
            a.valu(f'v_lshlrev_b32 v{T}, 1, v{T}')
            a.valu(f'v_xor_b32 v{T}, v{T}, v2')
            a.valu(f'v_lshlrev_b32 v{T}, 4, v{T}')
            a.valu(f'v_lshl_add_u32 v{LK+4+v}, v3, 8, v{T}')
        lane0_addr(LK+13, F_LAND)
        lane0_addr(LK+14, F_PL if ph2 else F_QL)
        a.valu(f'v_min_u32 v{T}, 12, v0')
        a.valu(f'v_lshlrev_b32 v{LK+6}, 2, v{T}')
        a.valu(f'v_add_u32 v{LK+6}, {F_CONS}, v{LK+6}')
        a.valu(f'v_cmp_lt_u32 vcc, 4, v{T}')
        vconst(LK+7, 0); vconst(LK+8, 32)
        a.valu(f'v_cndmask_b32 v{LK+7}, v{LK+7}, 32, vcc')
        a.valu(f'v_cndmask_b32 v{LK+8}, v{LK+8}, 64, vcc')
        a.valu(f'v_cmp_lt_u32 vcc, 9, v{T}')
        a.valu(f'v_cndmask_b32 v{LK+7}, v{LK+7}, 0, vcc')
        a.valu(f'v_cndmask_b32 v{LK+8}, v{LK+8}, 0, vcc')
        if ph2:
            a.valu(f'v_add_u32 v{T}, {F_PC - F_QC}, v{LK+6}')
            a.valu(f'v_cndmask_b32 v{LK+6}, v{LK+6}, v{T}, vcc')
    def l_wait_cons(lab):
        a.salu(f's_add_i32 s{S_T0}, s{S_STEP}, {D-3}')
        a.valu(f'v_med3_i32 v{LK+9}, s{S_T0}, v{LK+7}, v{LK+8}')
        a.label(lab)
        a.lq = []
        a.ds_read('ds_read_b32', LK+11, 1, LK+6, 0)
        a.wait(lgkm=0)
        a.valu(f'v_cmp_gt_u32 vcc, v{LK+9}, v{LK+11}')
        a.ctl(f's_cbranch_vccz {lab}_ok')
        wd()
        a.ctl(f's_sleep {lsleep}')
        a.ctl(f's_branch {lab}')
        a.label(f'{lab}_ok')
    def l_issue():
        a.salu(f's_add_u32 s{S_T0}, s{S_STEP}, {D}')
        a.salu(f's_and_b32 s{S_T1}, s{S_T0}, 3')
        a.salu(f's_lshl_b32 s{S_T1}, s{S_T1}, 14')
        if krot:
            a.salu(f's_and_b32 s{S_T2}, s{S_T0}, 32')
            a.salu(f's_add_u32 s{S_T0}, s{S_T0}, s{S_KR}')
            a.salu(f's_and_b32 s{S_T0}, s{S_T0}, 31')
            a.salu(f's_or_b32 s{S_T0}, s{S_T0}, s{S_T2}')
        a.salu(f's_lshl_b32 s{S_T0}, s{S_T0}, 13')
        a.salu(f's_add_u32 s{S_T2}, s{S_T0}, 4096')
        for part, (sd, nv, base) in enumerate(((S_K, 4, LK), (S_V, 2, LK+4))):
            for hi in range(2):
                a.salu(f's_add_u32 m0, s{S_T1}, {part*8192 + hi*4096}')
                for v in range(4):
                    a.vmem(f'buffer_load_dwordx4 v{base + v % nv}, s[{sd}:{sd+3}], s{S_T2 if hi else S_T0} offen offset:{v*1024}{kv_flags} lds')

    QACC, QXF = 8, 152
    QWF2 = [188, 224]
    QXA, QWA, QCO, QF, QV, QLA = 216, 217, 221, 222, 223, 240
    def qb_setup():
        a.valu(f'v_lshrrev_b32 v{T}, 3, v2')
        a.valu(f'v_lshlrev_b32 v{T}, 1, v{T}')
        a.valu(f'v_xor_b32 v{T}, v{T}, v3')
        a.valu(f'v_lshlrev_b32 v{T}, 4, v{T}')
        a.valu(f'v_lshl_add_u32 v{T}, v2, 6, v{T}')
        a.valu(f'v_add_u32 v{QXA}, {QSB}, v{T}')
        a.valu(f'v_lshrrev_b32 v{T}, 2, v2')
        a.valu(f'v_lshl_add_u32 v{T+1}, v3, 3, v{T}')
        a.valu(f'v_lshlrev_b32 v{T+1}, 8, v{T+1}')
        a.valu(f'v_and_b32 v{T+2}, 3, v0')
        a.valu(f'v_lshl_add_u32 v{T+1}, v{T+2}, 3, v{T+1}')
        a.valu(f'v_add_u32 v{T+1}, {QSB + 9216}, v{T+1}')
        a.valu(f'v_and_b32 v{T+2}, 1, v3')
        a.valu(f'v_lshl_add_u32 v{T}, v{T+2}, 2, v{T}')
        a.salu(f's_and_b32 s{S_T0}, s{S_W4}, 1')
        a.salu(f's_lshl_b32 s{S_T0}, s{S_T0}, 2')
        a.valu(f'v_xor_b32 v{T}, s{S_T0}, v{T}')
        for nu in range(4):
            a.valu(f'v_xor_b32 v{T+2}, {nu}, v{T}')
            a.valu(f'v_lshl_add_u32 v{QWA+nu}, v{T+2}, 5, v{T+1}')
        a.salu(f's_lshl_b32 s{S_T0}, s{S_W4}, 2')
        a.salu(f's_add_u32 s{S_T0}, s{S_T0}, {F_QC - 8}')
        lane0_addr(QCO, f's{S_T0}')
        vconst(QLA, F_QL); vconst(QF, 0); vconst(QV, 1)
    QVW, QVXX = 108, 156
    def ql_setup():
        a.valu(f'v_lshrrev_b32 v{T}, 2, v0')
        a.valu(f'v_mul_u32_u24 v{T}, 1152, v{T}')
        a.valu(f'v_lshrrev_b32 v{T+1}, 5, v0')
        a.valu(f'v_lshlrev_b32 v{T+1}, 1, v{T+1}')
        a.valu(f'v_and_b32 v{T+2}, 3, v0')
        a.valu(f'v_xor_b32 v{T+1}, v{T+1}, v{T+2}')
        a.valu(f'v_lshl_add_u32 v{QVXX}, v{T+1}, 4, v{T}')
        for t in range(1, 9): a.valu(f'v_add_u32 v{QVXX+t}, {t*16*1152 - (t % 4)*1024}, v{QVXX}')
        for jj in range(8): a.valu(f'v_add_u32 v{QVW+jj}, {256 + jj*4*8192 - (jj % 4)*1024}, v{VW0 if (jj >> 1) & 1 == 0 else VW1}')
    def ql_issue():
        a.salu(f's_and_b32 s{S_T1}, s{S_QM}, 3')
        a.salu(f's_mul_i32 s{S_T1}, s{S_T1}, {QST}')
        for jj in range(8):
            if jj % 4 == 0: a.salu(f's_add_u32 m0, s{S_T1}, {QSB + 9216 + jj*1024}')
            a.vmem(f'buffer_load_dwordx4 v{QVW+jj}, s[{S_WQ}:{S_WQ+3}], s{S_QW} offen offset:{(jj % 4)*1024}{w_flags} lds')
        for t in range(9):
            if t % 4 == 0: a.salu(f's_add_u32 m0, s{S_T1}, {QSB + t*1024}')
            a.vmem(f'buffer_load_dwordx4 v{QVXX+t}, s[{S_X}:{S_X+3}], s{S_QX} offen offset:{(t % 4)*1024}{w_flags} lds')
        a.vmem(f'buffer_load_dword v252, v{QVXX}, s[{S_X}:{S_X+3}], s{S_QX} offen')
        a.salu(f's_add_u32 s{S_QR}, s{S_QR}, 1')
        a.salu(f's_cmp_eq_u32 s{S_QR}, 18')
        a.salu(f's_cselect_b32 s{S_QR}, 0, s{S_QR}')
        a.salu(f's_cselect_b32 s{S_T0}, {(-17*64) & 0xffffffff}, 64')
        a.salu(f's_add_u32 s{S_QX}, s{S_QX}, s{S_T0}')
        a.salu(f's_lshl_b32 s{S_T0}, s{S_T0}, 12')
        a.salu(f's_add_u32 s{S_QW}, s{S_QW}, s{S_T0}')
        a.salu(f's_add_u32 s{S_QM}, s{S_QM}, 1')
    PVO, PVW = 108, 224
    def pl_setup():
        import gen_v12t
        gen_v12t.unit_srds(a, globals(), srd)
        gen_v12t.wo_voffsets(a, PVW, T, True)
        a.valu(f'v_lshlrev_b32 v{PVO}, 4, v0')
        for i in range(1, 9): a.valu(f'v_add_u32 v{PVO+i}, {i*131072 - (i % 4)*1024}, v{PVO}')
    def pl_issue():
        a.salu(f's_and_b32 s{S_T2}, s{S_QM}, 3')
        a.salu(f's_mul_i32 s{S_T1}, s{S_T2}, 18432')
        a.salu(f's_lshr_b32 s{S_T0}, s{S_QM}, 2')
        a.salu(f's_add_u32 s{S_T0}, s{S_T0}, s{S_NQ}')
        a.salu(f's_add_u32 s{S_T0}, s{S_T0}, s{S_B}')
        a.salu(f's_and_b32 s{S_T0}, s{S_T0}, 3')
        a.salu(f's_lshl_b32 s{S_T0}, s{S_T0}, 3')
        a.salu(f's_add_u32 s{S_T0}, s{S_T0}, s{S_T2}')
        a.salu(f's_lshl_b32 s{S_QX}, s{S_T0}, 10')
        a.salu(f's_mul_i32 s{S_QW}, s{S_T0}, {32*1152}')
        for i in range(9):
            if i % 4 == 0: a.salu(f's_add_u32 m0, s{S_T1}, {4*18432 + 9216 + i*1024}')
            a.vmem(f'buffer_load_dwordx4 v{PVW+i}, s[{S_PW}:{S_PW+3}], s{S_QW} offen offset:{(i % 4)*1024}{w_flags} lds')
        for i in range(9):
            if i % 4 == 0: a.salu(f's_add_u32 m0, s{S_T1}, {4*18432 + i*1024}')
            a.vmem(f'buffer_load_dwordx4 v{PVO+i}, s[{S_PO}:{S_PO+3}], s{S_QX} offen offset:{(i % 4)*1024} sc1 lds')
        a.salu(f's_add_u32 s{S_QM}, s{S_QM}, 1')
    nside = [0]
    def side_issue():
        nside[0] += 1
        a.salu(f's_cmp_eq_u32 s{S_G}, 0')
        a.ctl(f's_cbranch_scc1 L_sp{nside[0]}')
        ql_issue()
        a.ctl(f's_branch L_sq{nside[0]}')
        a.label(f'L_sp{nside[0]}')
        pl_issue()
        a.label(f'L_sq{nside[0]}')
    def ql_free(fresh):
        if fresh:
            a.lq = []
            a.ds_read('ds_read_b32', LK+11, 1, LK+6, 0)
            a.wait(lgkm=0)
        a.salu(f's_sub_i32 s{S_T0}, s{S_QM}, 3')
        a.valu(f'v_cmp_gt_i32 vcc, s{S_T0}, v{LK+11}')
        a.valu(f'v_readlane_b32 s{S_T1}, v{LK+11}, 12')
        a.ctl('s_nop 1')
        a.raw(f'  s_and_b32 s{S_T0}, vcc_lo, 0xc00')
        a.salu(f's_or_b32 s{S_T1}, s{S_T1}, s{S_G}')
        a.salu(f's_cmp_eq_u32 s{S_T1}, 0')
        a.salu(f's_cselect_b32 s{S_T0}, 1, s{S_T0}')
        a.salu(f's_cmp_eq_u32 s{S_T0}, 0')
    def ql_publish(sreg):
        a.valu(f'v_mov_b32 v{LK+15}, s{sreg}')
        a.ds_write('ds_write_b32', LK+14, LK+15, 1, 0)
    VW0, VW1, VX0, VX1, VX9, QVX = 232, 233, 234, 235, 236, 237
    a.valu(f'v_lshlrev_b32 v{T}, 1, v3')
    a.valu(f'v_xor_b32 v{T}, v{T}, v2')
    a.valu(f'v_lshlrev_b32 v{T}, 4, v{T}')
    a.valu(f'v_lshl_add_u32 v{VW0}, v3, 13, v{T}')
    a.valu(f'v_xor_b32 v{VW1}, 128, v{VW0}')
    a.valu(f'v_lshrrev_b32 v{T}, 3, v0')
    a.valu(f'v_mul_u32_u24 v{T}, 1152, v{T}')
    a.valu(f'v_and_b32 v{T+1}, 7, v0')
    a.valu(f'v_xor_b32 v{T+1}, v{T+1}, v3')
    a.valu(f'v_lshl_add_u32 v{VX0}, v{T+1}, 4, v{T}')
    a.valu(f'v_xor_b32 v{VX1}, 64, v{VX0}')
    a.salu(f's_and_b32 s{S_T0}, s{S_W4}, 1')
    a.salu(f's_lshl_b32 s{S_T1}, s{S_T0}, 6')
    a.valu(f'v_xor_b32 v{VX9}, s{S_T1}, v{VX0}')
    a.salu(f's_lshl_b32 s{S_A}, s{S_W4}, 12')
    a.salu(f's_lshl_b32 s{S_A2}, s{S_W4}, 17')
    a.salu(f's_mul_i32 s{S_A3}, s{S_W4}, {32*1152}')
    a.salu(f's_add_u32 s{S_T0}, s{S_T0}, 16')
    a.salu(f's_mul_i32 s{S_A4}, s{S_T0}, {8*1152}')
    a.salu(f's_lshl_b32 s{S_N}, s{S_T0}, 10')
    a.salu(f's_lshl_b32 s{S_T0}, s{S_CH}, 19')
    a.salu(f's_add_u32 s{S_A2}, s{S_A2}, s{S_T0}')
    a.salu(f's_lshl_b32 s{S_T0}, s{S_CH}, 7')
    a.salu(f's_add_u32 s{S_A3}, s{S_A3}, s{S_T0}')
    a.salu(f's_add_u32 s{S_A4}, s{S_A4}, s{S_T0}')
    a.salu(f's_mov_b32 s{S_DX}, s{S_CH}')
    a.salu(f's_mul_i32 s{S_T0}, s{S_B}, 165888')
    a.salu(f's_lshl_b32 s{S_T1}, s{S_P2}, 8')
    a.salu(f's_sub_u32 s{S_T2}, {576*8192}, s{S_T1}')
    a.raw('  s_waitcnt lgkmcnt(0)')
    srd(S_X, 4, 5, f's{S_T0}', 165888)
    srd(S_WQ, 10, 11, f's{S_T1}', f's{S_T2}')
    def p0_issue(n):
        xb, wb = XB[n % 3], WB[n % 3]
        for jj in range(4):
            a.salu(f's_add_u32 m0, s{S_A}, {wb + jj*1024}')
            a.salu(f's_add_u32 s{S_T0}, s{S_A2}, {jj*4*8192}')
            a.vmem(f'buffer_load_dwordx4 v{VW0 if jj < 2 else VW1}, s[{S_WQ}:{S_WQ+3}], s{S_T0} offen{w_flags} lds')
        for jj in range(4):
            a.salu(f's_add_u32 m0, s{S_A}, {xb + jj*1024}')
            a.salu(f's_add_u32 s{S_T0}, s{S_A3}, {jj*8*1152}')
            a.vmem(f'buffer_load_dwordx4 v{VX0 if jj % 2 == 0 else VX1}, s[{S_X}:{S_X+3}], s{S_T0} offen{w_flags} lds')
        a.salu(f's_add_u32 m0, s{S_N}, {xb}')
        a.salu(f's_add_u32 s{S_DX}, s{S_DX}, 1')
        a.vmem(f'buffer_load_dwordx4 v{VX9}, s[{S_X}:{S_X+3}], s{S_A4} offen{w_flags} lds')
        a.salu(f's_cmp_eq_u32 s{S_DX}, 9')
        a.salu(f's_cselect_b32 s{S_DX}, 0, s{S_DX}')
        a.salu(f's_cselect_b32 s{S_T0}, -16, 2')
        a.salu(f's_lshl_b32 s{S_T0}, s{S_T0}, 6')
        a.salu(f's_add_u32 s{S_A3}, s{S_A3}, s{S_T0}')
        a.salu(f's_add_u32 s{S_A4}, s{S_A4}, s{S_T0}')
        a.salu(f's_lshl_b32 s{S_T0}, s{S_T0}, 12')
        a.salu(f's_add_u32 s{S_A2}, s{S_A2}, s{S_T0}')
    p0_issue(0); p0_issue(1)
    a.ctl('s_branch L_common')

    a.label('L_x_pro')
    a.valu(f'v_lshlrev_b32 v{T}, 2, v0')
    a.valu(f'v_add_u32 v{T}, {SYNC}, v{T}')
    vconst(T+1, 0)
    a.valu(f'v_subrev_u32 v{T+2}, 9, v0')
    a.valu(f'v_cmp_gt_u32 vcc, 5, v{T+2}')
    a.valu(f'v_cndmask_b32 v{T+1}, v{T+1}, 32, vcc', extra_rd=[('vcc', 0)])
    a.salu(f's_cmp_lg_u32 s{S_W}, 0')
    a.ctl('s_cbranch_scc1 L_noinit')
    a.ds_write('ds_write_b32', T, T+1, 1, 0)
    a.label('L_noinit')
    a.raw('  s_waitcnt lgkmcnt(0)')
    a.lq = []
    a.label('L_common')
    a.salu(f's_lshl_b32 s{S_T0}, s{S_B}, 5')
    a.salu(f's_add_u32 s{S_T0}, s{S_T0}, s{S_P2}')
    a.salu(f's_lshr_b32 s{S_T1}, s{S_T0}, 14')
    a.salu(f's_lshl_b32 s{S_T0}, s{S_T0}, 18')
    a.salu(f's_add_u32 s{S_K}, s6, s{S_T0}'); a.salu(f's_addc_u32 s{S_K+1}, s7, s{S_T1}')
    a.salu(f's_mov_b32 s{S_K+2}, 524288'); a.salu(f's_mov_b32 s{S_K+3}, 0x20000')
    a.salu(f's_add_u32 s{S_V}, s8, s{S_T0}'); a.salu(f's_addc_u32 s{S_V+1}, s9, s{S_T1}')
    a.salu(f's_mov_b32 s{S_V+2}, 524288'); a.salu(f's_mov_b32 s{S_V+3}, 0x20000')
    srd(S_DBG, 16, 17, None, 256)
    if diag:
        for r in (VD0, VD1, VD2): a.valu(f'v_mov_b32 v{r}, 0')
        a.raw(f'  v_writelane_b32 v{VD2}, s72, 0')
        a.raw(f'  v_writelane_b32 v{VD2}, s74, 30')
        stamp(VD2, 22)
    a.salu(f's_mul_i32 s{S_T0}, s{S_B}, {9*131072}')
    a.salu(f's_lshl_b32 s{S_T1}, s{S_P2}, 12')
    a.salu(f's_add_u32 s{S_T0}, s{S_T0}, s{S_T1}')
    a.salu(f's_sub_u32 s{S_T2}, {9*131072}, s{S_T1}')
    srd(S_O, 18, 19, f's{S_T0}', f's{S_T2}')
    srd(S_FLG, 18, 19, FLAG_OFF, 2048)
    for sg in range(4):
        a.salu(f's_add_u32 s{S_T0}, s{S_W4}, {sg}')
        a.salu(f's_and_b32 s{S_T0}, s{S_T0}, 3')
        a.salu(f's_lshl_b32 s{S_T0}, s{S_T0}, 2')
        a.valu(f'v_add_u32 v{T}, s{S_T0}, v3')
        a.valu(f'v_xor_b32 v{T}, v{T}, v2')
        a.valu(f'v_lshlrev_b32 v{T}, 4, v{T}')
        a.valu(f'v_lshl_add_u32 v{V_AK+sg}, v2, 8, v{T}')
    a.valu(f'v_lshrrev_b32 v{T+2}, 2, v2')
    a.valu(f'v_lshl_add_u32 v{T}, v3, 2, v{T+2}')
    a.valu(f'v_and_b32 v{T+3}, 3, v0')
    a.valu(f'v_lshlrev_b32 v{T+3}, 3, v{T+3}')
    a.valu(f'v_lshl_add_u32 v{T+1}, v{T}, 8, v{T+3}')
    a.valu(f'v_add_u32 v{T+1}, 8192, v{T+1}')
    a.valu(f'v_and_b32 v{T}, 7, v{T}')
    for tau in range(8):
        a.salu(f's_lshl_b32 s{S_T0}, s{S_W4}, 1')
        a.salu(f's_add_u32 s{S_T0}, s{S_T0}, {tau}')
        a.salu(f's_and_b32 s{S_T0}, s{S_T0}, 7')
        a.valu(f'v_xor_b32 v{T+4}, s{S_T0}, v{T}')
        a.valu(f'v_lshl_add_u32 v{V_AV+tau}, v{T+4}, 5, v{T+1}')
    vconst(V_FA, F_LAND)
    a.salu(f's_mov_b32 s{S_C}, {f2u(CSCALE)}')
    a.salu(f's_mov_b32 s{S_C+1}, {f2u(CSCALE)}')
    a.salu(f's_cmp_eq_u32 s{S_G}, 0')
    a.ctl('s_cbranch_scc1 L_x_p0')

    for n in range(9):
        stamp(VD2, 34 + 2*n)
        if n < 8 and n <= kvt: a.wait(vm=9 if n < 8 else 0)
        else:
            a.salu(f's_cmp_eq_u32 s{S_W4}, 1')
            a.ctl(f's_cbranch_scc1 L_p0w{n}')
            a.wait(vm=(9 if n < 8 else 0) + (3 if qpf else 0))
            a.label(f'L_p0w{n}')
            a.wait(vm=(9 if n < 8 else 0) + 16*(n - kvt))
        stamp(VD2, 35 + 2*n)
        a.ctl('s_barrier')
        if n <= 6: p0_issue(n + 2)
        if n == 2:
            l_setup(); ql_setup()
        if n == 3:
            a.salu(f's_cmp_lt_u32 s{S_W4}, 2')
            a.ctl('s_cbranch_scc1 L_p0q')
            qb_setup()
            a.label('L_p0q')
        if 4 <= n <= 7:
            a.salu(f's_cmp_lt_u32 s{S_W4}, 2')
            a.ctl(f's_cbranch_scc1 L_p0q{n}')
            for r in range(36): vconst(QACC + 36*(n-4) + r, 0)
            a.label(f'L_p0q{n}')
        if n == kvt:
            a.salu(f's_cmp_lg_u32 s{S_W4}, 1')
            a.ctl('s_cbranch_scc1 L_p0nk')
            a.salu(f's_mov_b32 s{S_STEP}, {-D}')
            l_issue()
            a.ctl('s_branch L_p0k')
            a.label('L_p0nk')
            if qpf:
                a.salu(f's_and_b32 s{S_T0}, s{S_B}, 7')
                a.salu(f's_mul_i32 s{S_T0}, s{S_T0}, {72*8192}')
                a.salu(f's_add_u32 s{S_T0}, s{S_T0}, 256')
                a.salu(f's_max_u32 s{S_T1}, s{S_W4}, 1')
                a.salu(f's_sub_u32 s{S_T1}, s{S_T1}, 1')
                a.salu(f's_mul_i32 s{S_T1}, s{S_T1}, {24*8192}')
                a.salu(f's_add_u32 s{S_T0}, s{S_T0}, s{S_T1}')
                a.valu(f'v_lshrrev_b32 v{T}, 3, v0')
                a.valu(f'v_lshlrev_b32 v{T}, 13, v{T}')
                a.valu(f'v_and_b32 v{T+1}, 7, v0')
                a.valu(f'v_lshl_add_u32 v{T}, v{T+1}, 5, v{T}')
                for k in range(3):
                    a.vmem(f'buffer_load_dword v252, v{T}, s[{S_WQ}:{S_WQ+3}], s{S_T0} offen{w_flags}')
                    a.salu(f's_add_u32 s{S_T0}, s{S_T0}, {8*8192}')
            a.label('L_p0k')
        if n > kvt:
            a.salu(f's_cmp_lg_u32 s{S_W4}, 1')
            a.ctl(f's_cbranch_scc1 L_p0m{n}')
            for st in range(n - kvt, D if n == 8 else n - kvt + 1):
                a.salu(f's_mov_b32 s{S_STEP}, {st - D}')
                l_issue()
            a.label(f'L_p0m{n}')
    if wopf:
        a.salu(f's_cmp_lg_u32 s{S_W4}, 3')
        a.ctl('s_cbranch_scc1 L_p0z')
        a.salu(f's_bfe_u32 s{S_T0}, s2, 0x20001')
        a.salu(f's_mul_i32 s{S_T0}, s{S_T0}, {1024*1152}')
        a.salu(f's_lshr_b32 s{S_T1}, s2, 6')
        a.salu(f's_mul_i32 s{S_T1}, s{S_T1}, 288')
        a.salu(f's_add_u32 s{S_T0}, s{S_T0}, s{S_T1}')
        a.salu(f's_and_b32 s{S_T1}, s{S_B}, 7')
        a.salu(f's_mul_i32 s{S_T1}, s{S_T1}, {128*1152}')
        a.salu(f's_add_u32 s{S_T0}, s{S_T0}, s{S_T1}')
        srd(S_OUT, 12, 13, None, 4096*1152)
        a.valu(f'v_mul_u32_u24 v{T}, 1152, v0')
        for grp in range(2):
            for off in (0, 128, 284):
                a.vmem(f'buffer_load_dword v252, v{T}, s[{S_OUT}:{S_OUT+3}], s{S_T0} offen offset:{off}')
            a.salu(f's_add_u32 s{S_T0}, s{S_T0}, {64*1152}')
        a.label('L_p0z')
    a.ctl('s_barrier')
    a.salu(f's_cmp_eq_u32 s{S_W4}, 0')
    a.ctl('s_cbranch_scc1 L_y0')
    a.salu(f's_mov_b32 s{S_STEP}, 0')
    a.salu(f's_cmp_eq_u32 s{S_W4}, 1')
    a.ctl('s_cbranch_scc1 L_lrole')
    a.ctl('s_branch L_qb')

    a.label('L_x_p0')
    VWA = 188; VXA = [196, 197]; VXN = [198, 199]
    a.valu(f'v_lshl_add_u32 v{T+4}, v3, 3, v{T+2}')
    a.valu(f'v_lshl_add_u32 v{T+4}, v{T+4}, 8, v{T+3}')
    a.valu(f'v_add_u32 v{T+4}, {WB[0]}, v{T+4}')
    a.valu(f'v_and_b32 v{T+5}, 1, v3')
    a.valu(f'v_lshl_add_u32 v{T+5}, v{T+5}, 2, v{T+2}')
    for tau in range(8):
        a.salu(f's_lshl_b32 s{S_T0}, s{S_W4}, 1')
        a.salu(f's_add_u32 s{S_T0}, s{S_T0}, {tau}')
        a.salu(f's_and_b32 s{S_T0}, s{S_T0}, 7')
        a.valu(f'v_xor_b32 v{T}, s{S_T0}, v{T+5}')
        a.valu(f'v_lshl_add_u32 v{VWA+tau}, v{T}, 5, v{T+4}')
    a.valu(f'v_lshrrev_b32 v{T}, 1, v2')
    a.valu(f'v_xor_b32 v{T}, v{T}, v3')
    a.valu(f'v_lshlrev_b32 v{T}, 4, v{T}')
    a.valu(f'v_lshl_add_u32 v{T}, v2, 7, v{T}')
    a.salu(f's_lshl_b32 s{S_T0}, s{S_W4}, 12')
    a.salu(f's_add_u32 s{S_T0}, s{S_T0}, {XB[0]}')
    a.valu(f'v_add_u32 v{VXA[0]}, s{S_T0}, v{T}')
    a.valu(f'v_xor_b32 v{VXA[1]}, 64, v{VXA[0]}')
    a.valu(f'v_add_u32 v{VXN[0]}, {XB[0] + 16384}, v{T}')
    a.valu(f'v_xor_b32 v{VXN[1]}, 64, v{VXN[0]}')
    A9 = 72
    WF = [V_KF, V_VF]; XF = [92, 104]
    for r in range(8, 80): vconst(r, 0)
    for r in range(32): vconst(WF[1]+r, 0)
    for r in range(12): vconst(XF[1]+r, 0)
    def qp_reads(sp):
        L = []
        wf, xf = WF[sp], XF[sp]
        L.append(lambda: a.ds_read('ds_read_b128', xf, 4, VXA[sp], 0))
        for tau in range(8):
            for rd in range(2):
                L.append(lambda tau=tau, rd=rd: a.ds_read('ds_read_b64_tr_b16', wf + 4*tau + 2*rd, 2, VWA+tau, sp*8192 + rd*1024))
            if tau == 0:
                L.append(lambda: a.ds_read('ds_read_b128', xf+4, 4, VXA[sp], 2048))
                L.append(lambda: a.ds_read('ds_read_b128', xf+8, 4, VXN[sp], 0))
        return L
    def qp_mfmas(sp):
        L = []
        wf, xf = WF[sp], XF[sp]
        for tau in range(8):
            L.append(lambda tau=tau: a.mfma(V_O[0]+4*tau, wf+4*tau, xf, V_O[0]+4*tau))
            L.append(lambda tau=tau: a.mfma(V_O[1]+4*tau, wf+4*tau, xf+4, V_O[1]+4*tau))
            if tau < 2:
                L.append(lambda tau=tau: a.mfma(A9+4*tau, wf+4*tau, xf+8, A9+4*tau))
        return L
    a.salu(f's_mov_b32 s{S_N}, 0')
    a.eager = 14
    stamp(VD2, 1)
    if diag: a.salu('s_mov_b32 s79, 34')
    a.label('L_qploop')
    for k in range(3):
        if diag:
            stamp(VD2, 's79'); a.salu('s_add_u32 s79, s79, 1')
        a.wait(lgkm=0)
        a.ctl('s_barrier')
        if diag:
            stamp(VD2, 's79'); a.salu('s_add_u32 s79, s79, 1')
        dx = XB[(k+1) % 3] - XB[k]; dw = WB[(k+1) % 3] - WB[k]
        for f in interleave(qp_mfmas(1), qp_reads(0)): f()
        m0 = qp_mfmas(0)
        tail = [lambda r=r: a.valu(f'v_add_u32 v{r}, {dx & 0xffffffff}, v{r}') for r in VXA + VXN] + \
               [lambda r=r: a.valu(f'v_add_u32 v{VWA+r}, {dw & 0xffffffff}, v{VWA+r}') for r in range(8)]
        for f in interleave(m0[:12], qp_reads(1)): f()
        for f in interleave(m0[12:], tail): f()
    a.salu(f's_add_u32 s{S_N}, s{S_N}, 1')
    a.salu(f's_cmp_lt_u32 s{S_N}, 3')
    a.ctl('s_cbranch_scc1 L_qploop')
    a.wait(lgkm=0)
    for f in qp_mfmas(1): f()
    stamp(VD2, 10)
    a.ctl('s_nop 7')
    def conv(accbase, qbase, nsig):
        for r in range(4*nsig): a.valu(f'v_pk_mul_f32 v[{accbase+2*r}:{accbase+2*r+1}], v[{accbase+2*r}:{accbase+2*r+1}], s[{S_C}:{S_C+1}]')
        for sg in range(nsig):
            for j in range(4):
                a.valu(f'v_cvt_pk_bf16_f32 v{qbase+4*sg+j}, v{accbase+8*sg+2*j}, v{accbase+8*sg+2*j+1}')
        for sg in range(nsig):
            q = qbase + 4*sg
            a.valu(f'v_permlane32_swap_b32 v{q}, v{q+2}')
            a.valu(f'v_permlane32_swap_b32 v{q+1}, v{q+3}')
        for sg in range(nsig):
            q = qbase + 4*sg
            a.valu(f'v_permlane16_swap_b32 v{q}, v{q+2}')
            a.valu(f'v_permlane16_swap_b32 v{q+1}, v{q+3}')
    conv(A9, V_Q9, 1)
    a.salu(f's_lshl_b32 s{S_T0}, s{S_W4}, 10')
    a.salu(f's_add_u32 s{S_T0}, s{S_T0}, {Q9X}')
    a.valu(f'v_lshlrev_b32 v{T}, 4, v0')
    a.valu(f'v_add_u32 v{T+1}, s{S_T0}, v{T}')
    a.ds_write('ds_write_b128', T+1, V_Q9, 4, 0)
    a.wait(lgkm=0)
    a.ctl('s_barrier')
    conv(V_O[0], V_Q[0], 4)
    conv(V_O[1], V_Q[1], 4)
    def init_state(nrole):
        for r in range(8, 40 if nrole else 72): vconst(r, 0)
        for r in range(72, 88): vconst(r, 0)
        for r in range(4): vconst(V_ONES+r, '0x3f803f80')
        for r in range(32): vconst(V_VF+r, 0)
        if nrole:
            for r in range(8): vconst(V_S[0]+r, '0xff800000')
        else:
            for r in range(4): vconst(V_S[0]+r, 0)
            for r in range(8): vconst(V_S[1]+r, '0xff800000')
        for t in range(2):
            a.salu(f's_mov_b32 s{S_TH[t]}, 0xff800000')
            a.salu(f's_mov_b32 s{S_FL[t]}, 0xff800000')
        vconst(V_F, 0)
    init_state(False)
    a.salu(f's_mov_b32 s{S_STEP}, 0')
    a.salu(f's_mov_b32 s{S_END}, 32')
    vconst(V_ST, 0)
    a.salu(f's_lshl_b32 s{S_T0}, s{S_W4}, 2')
    a.salu(f's_add_u32 s{S_T0}, s{S_T0}, {F_CONS}')
    lane0_addr(V_CA, f's{S_T0}')
    lane0_addr(V_HA, None)
    stamp(VD2, 11)
    a.label('L_astart')
    a.ctl(f's_setprio {PA}')

    stubs = []; spins = []
    def sm(t, tag):
        s = V_S[t]; mx = V_MX[t]
        L = []
        L.append(lambda: a.valu(f'v_max3_f32 v{mx}, v{s}, v{s+1}, v{s+2}'))
        L.append(lambda: a.valu(f'v_max3_f32 v{mx}, v{mx}, v{s+3}, v{s+4}'))
        L.append(lambda: a.valu(f'v_max3_f32 v{mx}, v{mx}, v{s+5}, v{s+6}'))
        L.append(lambda: a.valu(f'v_max_f32 v{mx}, v{mx}, v{s+7}'))
        def chk():
            a.valu(f'v_cmp_lt_f32 vcc, s{S_TH[t]}, v{mx}')
            a.ctl(f's_cbranch_vccnz L_stub{tag}')
            a.label(f'L_back{tag}')
            stubs.append((tag, t))
        L.append(chk)
        for j in range(4):
            L.append(lambda j=j: a.valu(f'v_exp_f32 v{s+2*j}, v{s+2*j}'))
            L.append(lambda j=j: a.valu(f'v_exp_f32 v{s+2*j+1}, v{s+2*j+1}'))
            if j > 0:
                L.append(lambda j=j: a.valu(f'v_cvt_pk_bf16_f32 v{s+j-1}, v{s+2*j-2}, v{s+2*j-1}'))
        L.append(lambda: a.valu(f'v_cvt_pk_bf16_f32 v{s+3}, v{s+6}, v{s+7}'))
        return L
    def pv(t):
        return [lambda tau=tau: a.mfma(V_O[t]+4*tau, V_VF+4*tau, V_S[t], V_O[t]+4*tau) for tau in range(8)] + \
               [lambda: a.mfma(V_L[t], V_ONES, V_S[t], V_L[t])]
    def qk(t, qb):
        return [lambda kt=kt, sg=sg: a.mfma(V_S[t]+4*kt, V_KF+4*(kt*4+sg), qb+4*sg, V_NM[t] if sg == 0 else V_S[t]+4*kt)
                for kt in range(2) for sg in range(4)]
    def run(M, gaps):
        for i, m in enumerate(M):
            m()
            for f in gaps[i]: f()
    def place(gaps, items, g0, g1):
        n = len(items); span = g1 - g0 + 1
        for i, f in enumerate(items):
            gaps[g0 + i * span // n].append(f)
    def body(p, role):
        lab = 'a' if role == 'A' else 'n'
        a.label(f'L_{lab}body{p}')
        stamp(VD0, f's{S_STEP}')
        a.valu(f'v_add_u32 v{V_ST}, 1, v{V_ST}')
        a.valu(f'v_min_u32 v{V_H}, {32+D}, v{V_ST}')
        a.wait(vm=(16*(D-1-p) if p < D else None), lgkm=0)
        a.emit(Ins(f'ds_max_u32 v{V_HA}, v{V_H}', 'ds', vset(V_HA) | vset(V_H), set())); a.lq.append((set(), len(a.out)))
        a.valu(f'v_cmp_ge_u32 vcc, s{S_STEP}, v{V_F}')
        a.ctl(f's_cbranch_vccnz L_{lab}spin{p}')
        a.label(f'L_{lab}go{p}')
        spins.append((lab, p))
        stamp(VD1, f's{S_STEP}')
        so = p * 16384
        kreads = [lambda kt=kt, sg=sg: a.ds_read('ds_read_b128', V_KF+4*(kt*4+sg), 4, V_AK+sg, so + kt*4096) for kt in range(2) for sg in range(4)]
        def vread(tau): return [lambda rd=rd: a.ds_read('ds_read_b64_tr_b16', V_VF+4*tau+2*rd, 2, V_AV+tau, so + rd*4096) for rd in range(2)]
        def publish():
            a.wait(lgkm=0)
            a.ds_write('ds_write_b32', V_CA, V_ST, 1, 0)
        flagrd = lambda: a.ds_read('ds_read_b32', V_F, 1, V_FA, 0)
        tailc = [lambda: a.salu(f's_add_u32 s{S_STEP}, s{S_STEP}, 1'), lambda: a.salu(f's_cmp_eq_u32 s{S_STEP}, s{S_END}')]
        if role == 'A':
            M = pv(0) + qk(0, V_Q[0]) + pv(1) + qk(1, V_Q[1])
            gaps = [[] for _ in M]
            place(gaps, kreads, 0, 3)
            place(gaps, sm(1, f'a{p}_1'), 1, 15)
            for tau in range(8): gaps[17+tau] += vread(tau)
            place(gaps, sm(0, f'a{p}_0'), 20, 33)
            gaps[29].append(publish); gaps[31].append(flagrd)
            gaps[31] += tailc[:1]; gaps[33] += tailc[1:]
            run(M, gaps)
            a.ctl('s_cbranch_scc1 L_a_done')
        else:
            M = pv(0) + qk(0, V_Q9)
            gaps = [[] for _ in M]
            for f in kreads: f()
            for f in sm(0, f'n{p}_0'): f()
            for tau in range(8): gaps[tau] += vread(tau)
            gaps[13].append(publish); gaps[14].append(flagrd)
            gaps[15] += tailc
            run(M, gaps)
            a.ctl('s_cbranch_scc1 L_n_done')
    for p in range(4): body(p, 'A')
    a.ctl('s_branch L_abody0')
    a.label('L_nstart')
    a.ctl(f's_setprio {PN}')
    for p in range(4): body(p, 'N')
    a.ctl('s_branch L_nbody0')
    for lab, p in spins:
        a.label(f'L_{lab}spin{p}')
        wd()
        a.ctl(f's_sleep {asleep}')
        a.lq = []
        a.ds_read('ds_read_b32', V_F, 1, V_FA, 0)
        a.wait(lgkm=0)
        a.valu(f'v_cmp_ge_u32 vcc, s{S_STEP}, v{V_F}')
        a.ctl(f's_cbranch_vccnz L_{lab}spin{p}')
        a.ctl(f's_branch L_{lab}go{p}')

    def spin_lds(addr, thr, lab, reg=T, sleep=2):
        vconst(reg+1, addr)
        a.label(lab)
        a.lq = []
        a.ds_read('ds_read_b32', reg, 1, reg+1, 0)
        a.wait(lgkm=0)
        a.valu(f'v_cmp_le_u32 vcc, {thr}, v{reg}')
        a.ctl(f's_cbranch_vccnz {lab}_ok')
        wd()
        a.ctl(f's_sleep {sleep}')
        a.ctl(f's_branch {lab}')
        a.label(f'{lab}_ok')
    def lds_add1(addr, rtn=None):
        vconst(T+1, addr); vconst(T+2, 1)
        a.salu('s_mov_b64 exec, 1')
        if rtn is None: a.emit(Ins(f'ds_add_u32 v{T+1}, v{T+2}', 'ds', vset(T+1, 2), set()))
        else: a.emit(Ins(f'ds_add_rtn_u32 v{rtn}, v{T+1}, v{T+2}', 'ds', vset(T+1, 2), vset(rtn)))
        a.salu('s_mov_b64 exec, -1')
        a.wait(lgkm=0)
    def epilogue(tiles, ninth):
        a.valu(f'v_lshlrev_b32 v{T+4}, 4, v0')
        for t in tiles: a.valu(f'v_rcp_f32 v{T+2*t}, v{V_L[t]}')
        for t in tiles: a.valu(f'v_mov_b32 v{T+2*t+1}, v{T+2*t}')
        for t in tiles:
            for sg in range(4):
                for r in range(0, 8, 2):
                    o = V_O[t]+8*sg+r
                    a.valu(f'v_pk_mul_f32 v[{o}:{o+1}], v[{o}:{o+1}], v[{T+2*t}:{T+2*t+1}]')
                dst = V_KF + 16*t + 4*sg
                for j in range(4):
                    a.valu(f'v_cvt_pk_bf16_f32 v{dst+j}, v{V_O[t]+8*sg+2*j}, v{V_O[t]+8*sg+2*j+1}')
        tg = 'n' if ninth else 'a'
        a.salu(f's_cmp_eq_u32 s{S_G}, {1 if ninth else 0}')
        a.ctl(f's_cbranch_scc1 L_ep{tg}_l')
        if ninth: a.salu(f's_mov_b32 s{S_T2}, {4096 + 8*131072}')
        else:
            a.salu(f's_lshl_b32 s{S_T2}, s{S_W4}, 18')
            a.salu(f's_add_u32 s{S_T2}, s{S_T2}, 4096')
        for sg in range(4):
            a.salu(f's_add_u32 s{S_T0}, s{S_W4}, {sg}')
            a.salu(f's_and_b32 s{S_T0}, s{S_T0}, 3')
            a.salu(f's_lshl_b32 s{S_T0}, s{S_T0}, 10')
            a.salu(f's_add_u32 s{S_T0}, s{S_T0}, s{S_T2}')
            for t in tiles:
                dst = V_KF + 16*t + 4*sg
                if t: a.salu(f's_add_u32 s{S_T0}, s{S_T0}, 131072')
                a.vmem(f'buffer_store_dwordx4 v[{dst}:{dst+3}], v{T+4}, s[{S_O}:{S_O+3}], s{S_T0} offen{ost}')
        a.ctl('s_branch L_b_pub')
        a.label(f'L_ep{tg}_l')
        a.lq = []
        if ninth: a.salu(f's_mov_b32 s{S_T2}, {OST + 32*1024}')
        else:
            a.salu(f's_lshl_b32 s{S_T2}, s{S_W4}, 13')
            a.salu(f's_add_u32 s{S_T2}, s{S_T2}, {OST}')
        for sg in range(4):
            a.salu(f's_add_u32 s{S_T0}, s{S_W4}, {sg}')
            a.salu(f's_and_b32 s{S_T0}, s{S_T0}, 3')
            a.salu(f's_lshl_b32 s{S_T0}, s{S_T0}, 10')
            a.salu(f's_add_u32 s{S_T0}, s{S_T0}, s{S_T2}')
            a.valu(f'v_add_u32 v{T+sg}, s{S_T0}, v{T+4}')
            for t in tiles:
                a.ds_write('ds_write_b128', T+sg, V_KF + 16*t + 4*sg, 4, t*4096)
        a.wait(lgkm=0)
        lds_add1(F_OA)
    def o_touch(hsel):
        a.valu(f'v_lshrrev_b32 v{T+3}, 5, v0')
        a.valu(f'v_lshlrev_b32 v{T+3}, 17, v{T+3}')
        a.valu(f'v_and_b32 v{T+4}, 31, v0')
        a.valu(f'v_lshl_add_u32 v{T+3}, v{T+4}, 7, v{T+3}')
        for k in range(5):
            a.salu(f's_mov_b32 s{S_T0}, {hsel*4096 + k*2*131072}')
            a.vmem(f'buffer_load_dword v252, v{T+3}, s[{S_O}:{S_O+3}], s{S_T0} offen sc1')
    def set_flag(hsel, tag=''):
        spin_lds(F_TAG, 1, f'L_wtag{hsel}{tag}')
        a.salu(f's_lshl_b32 s{S_T0}, s{S_B}, 5')
        a.salu(f's_add_u32 s{S_T0}, s{S_T0}, s{S_P2}')
        a.salu(f's_lshl_b32 s{S_T0}, s{S_T0}, 2')
        vconst(T+2, hsel*4)
        a.wait(lgkm=0)
        a.salu('s_mov_b64 exec, 1')
        a.vmem(f'buffer_store_dword v{T}, v{T+2}, s[{S_FLG}:{S_FLG+3}], s{S_T0} offen sc1')
        a.salu('s_mov_b64 exec, -1')
        if touch: o_touch(hsel)
    def read_qb(tile_sgpr_or_int, qbase, rot):
        for sg in range(4):
            if rot:
                a.salu(f's_add_u32 s{S_T0}, s{S_W4}, {sg}')
                a.salu(f's_and_b32 s{S_T0}, s{S_T0}, 3')
                a.salu(f's_and_b32 s{S_T1}, s{S_T0}, 1')
                a.salu(f's_lshl_b32 s{S_T1}, s{S_T1}, 10')
                a.salu(f's_lshr_b32 s{S_T0}, s{S_T0}, 1')
                a.salu(f's_mul_i32 s{S_T0}, s{S_T0}, {QA[1]-QA[0]}')
                a.salu(f's_add_u32 s{S_T0}, s{S_T0}, s{S_T1}')
                a.salu(f's_lshl_b32 s{S_T1}, s{S_W4}, 12')
                a.salu(f's_add_u32 s{S_T0}, s{S_T0}, s{S_T1}')
                a.salu(f's_add_u32 s{S_T0}, s{S_T0}, {QA[0]}')
                a.valu(f'v_lshl_add_u32 v{T+2+sg}, v0, 4, s{S_T0}')
                a.ds_read('ds_read_b128', V_Q[0]+4*sg, 4, T+2+sg, 0)
                a.ds_read('ds_read_b128', V_Q[1]+4*sg, 4, T+2+sg, 2048)
            else:
                a.salu(f's_mov_b32 s{S_T0}, {QA[sg >> 1] + (16 + (sg & 1))*1024}')
                a.valu(f'v_lshl_add_u32 v{T+2+sg}, v0, 4, s{S_T0}')
                a.ds_read('ds_read_b128', V_Q9+4*sg, 4, T+2+sg, 0)

    a.label('L_y0')
    a.lq = []
    a.salu(f's_mov_b32 s{S_T0}, {Q9X}')
    a.valu(f'v_lshl_add_u32 v{T}, v0, 4, s{S_T0}')
    for sg in range(4): a.ds_read('ds_read_b128', V_Q9+4*sg, 4, T, sg*1024)
    init_state(True)
    a.salu(f's_mov_b32 s{S_STEP}, 0'); a.salu(f's_mov_b32 s{S_END}, 32')
    vconst(V_ST, 0); lane0_addr(V_CA, F_CONS + 16); lane0_addr(V_HA, None)
    a.ctl('s_branch L_nstart')

    a.label('L_yswitch')
    a.lq = []
    a.ctl(f's_setprio {PN}')
    vconst(V_FA, F_LAND)
    spin_lds(F_QB, 2, 'L_wqb')
    read_qb(None, None, True)
    a.wait(lgkm=0)
    spin_lds(F_LAND, 31, 'L_wl31', sleep=8)
    init_state(False)
    a.salu(f's_mov_b32 s{S_STEP}, 32'); a.salu(f's_mov_b32 s{S_END}, 64')
    vconst(V_ST, 32)
    a.salu(f's_lshl_b32 s{S_T0}, s{S_W4}, 2')
    a.salu(f's_add_u32 s{S_T0}, s{S_T0}, {F_CONS + 20}')
    lane0_addr(V_CA, f's{S_T0}')
    stamp(VD2, 28)
    a.ctl('s_branch L_astart')

    a.label('L_a_done')
    a.lq = []
    stamp(VD2, 20)
    if wot:
        a.salu(f's_cmp_lg_u32 s{S_W}, 3')
        a.ctl('s_cbranch_scc1 L_ad1')
        a.salu(f's_mul_i32 s{S_T0}, s{S_KQ}, {1024*1152}')
        a.salu(f's_mul_i32 s{S_T1}, s{S_NQ}, 288')
        a.salu(f's_add_u32 s{S_T0}, s{S_T0}, s{S_T1}')
        a.salu(f's_and_b32 s{S_T1}, s{S_B}, 7')
        a.salu(f's_mul_i32 s{S_T1}, s{S_T1}, {128*1152}')
        a.salu(f's_add_u32 s{S_T0}, s{S_T0}, s{S_T1}')
        srd(S_OUT, 12, 13, None, 4096*1152)
        a.valu(f'v_mul_u32_u24 v{T}, 1152, v0')
        for grp in range(2):
            for off in (0, 128, 284):
                a.vmem(f'buffer_load_dword v252, v{T}, s[{S_OUT}:{S_OUT+3}], s{S_T0} offen offset:{off}')
            a.salu(f's_add_u32 s{S_T0}, s{S_T0}, {64*1152}')
        a.label('L_ad1')
    a.salu(f's_cmp_lg_u32 s{S_W}, 1')
    a.ctl('s_cbranch_scc1 L_adrain')
    a.wait(lgkm=0)
    l_setup(True)
    l_wait_cons('L_x1c')
    l_issue()
    a.ctl(f's_setprio {PL}')
    a.label('L_adrain')
    a.wait(lgkm=0)
    a.ctl('s_nop 3')
    M = pv(0) + pv(1)
    gaps = [[] for _ in M]
    place(gaps, sm(1, 'drain_1'), 0, 7)
    run(M, gaps)
    stamp(VD2, 23)
    a.ctl('s_nop 7')
    epilogue((0, 1), False)
    stamp(VD2, 24)
    a.salu(f's_cmp_eq_u32 s{S_W4}, 1')
    a.ctl('s_cbranch_scc1 L_x1')
    a.salu(f's_cmp_eq_u32 s{S_W4}, 0')
    a.ctl('s_cbranch_scc1 L_x0')
    a.ctl(f's_setprio {PG}')
    spin_lds(F_OA, 5, 'L_woa')
    a.salu(f's_and_b32 s{S_T1}, s{S_W4}, 1')
    a.salu(f's_mul_i32 s{S_T0}, s{S_T1}, 2048')
    a.salu(f's_add_u32 s{S_T0}, s{S_T0}, {OST}')
    a.valu(f'v_lshl_add_u32 v{T}, v0, 4, s{S_T0}')
    a.valu(f'v_lshlrev_b32 v{T+4}, 4, v0')
    a.salu(f's_mul_i32 s{S_T1}, s{S_T1}, 2048')
    for qt in range(9):
        for u in range(2): a.ds_read('ds_read_b128', 8 + (qt*2+u)*4, 4, T, qt*4096 + u*1024)
    for qt in range(9):
        a.salu(f's_add_u32 s{S_T0}, s{S_T1}, {qt*131072}')
        for u in range(2):
            r = 8 + (qt*2+u)*4
            a.vmem(f'buffer_store_dwordx4 v[{r}:{r+3}], v{T+4}, s[{S_O}:{S_O+3}], s{S_T0} offen offset:{u*1024}{ost}')
    a.wait(vm=0)
    lds_add1(F_OC)
    a.salu(f's_cmp_lg_u32 s{S_W4}, 2')
    a.ctl('s_cbranch_scc1 L_prole')
    spin_lds(F_OC, 2, 'L_woc')
    spin_lds(F_CONS + 36, 34, 'L_wx0')
    set_flag(0)
    a.ctl('s_branch L_prole')
    a.label('L_x0')
    spin_lds(F_QB, 2, 'L_wqb0')
    read_qb(None, None, False)
    init_state(True)
    a.salu(f's_mov_b32 s{S_END}, 64')
    lane0_addr(V_CA, F_CONS + 36)
    lane0_addr(V_HA, None)
    stamp(VD2, 25)
    a.ctl('s_branch L_nstart')
    a.label('L_x1')
    a.salu(f's_mov_b32 s{S_STEP}, 33')
    a.salu(f's_mov_b32 s{S_A}, {32+D}')
    a.salu(f's_mov_b32 s{S_END}, {64-D}')
    a.salu(f's_mov_b32 s{S_A2}, 1')
    pl_setup()
    a.salu(f's_mov_b32 s{S_QLIM}, 16')
    a.ctl('s_branch L_linit')

    a.label('L_lrole')
    a.salu(f's_mov_b32 s{S_STEP}, 0')
    a.salu(f's_mov_b32 s{S_A}, 0')
    a.salu(f's_mov_b32 s{S_END}, 32')
    a.salu(f's_mov_b32 s{S_A2}, 0')
    a.salu(f's_lshl_b32 s{S_QX}, s{S_CH}, 7')
    a.salu(f's_lshl_b32 s{S_QW}, s{S_CH}, 19')
    a.salu(f's_lshl_b32 s{S_QR}, s{S_CH}, 1')
    a.salu(f's_mov_b32 s{S_QLIM}, 18')
    a.label('L_linit')
    for r in (S_QM, S_H1, S_H2, S_P1, S_P2q, S_P3, S_QK): a.salu(f's_mov_b32 s{r}, 0')
    a.label('L_lloop')
    a.ctl(f's_setprio {PL}')
    def l_publish(vm, lab):
        if vm is not None: a.wait(vm=vm)
        a.salu(f's_cmp_lt_u32 s{S_STEP}, s{S_A}')
        a.ctl(f's_cbranch_scc1 {lab}_np')
        a.salu(f's_cmp_eq_u32 s{S_A2}, 0')
        a.ctl(f's_cbranch_scc1 {lab}_go')
        spin_lds(F_LAND, f's{S_STEP}', f'{lab}_prev', reg=LK+11)
        a.salu(f's_mov_b32 s{S_A2}, 0')
        a.label(f'{lab}_go')
        a.salu(f's_add_u32 s{S_T0}, s{S_STEP}, 1')
        a.valu(f'v_mov_b32 v{LK+10}, s{S_T0}')
        a.emit(Ins(f'ds_max_u32 v{LK+13}, v{LK+10}', 'ds', vset(LK+13) | vset(LK+10), set()))
        a.label(f'{lab}_np')
    a.label('L_lit')
    stamp(VD0, f's{S_STEP}')
    assert D == 2
    a.salu(f's_add_u32 s{S_T0}, s{S_H1}, s{S_H2}')
    a.salu(f's_cmp_eq_u32 s{S_T0}, 2')
    a.ctl('s_cbranch_scc1 L_lw2')
    a.salu(f's_cmp_eq_u32 s{S_T0}, 1')
    a.ctl('s_cbranch_scc1 L_lw1')
    a.wait(vm=16)
    a.label('L_lw1')
    a.wait(vm=34)
    a.label('L_lw2')
    a.wait(vm=52)
    l_publish(None, 'L_lp')
    ql_publish(S_P3)
    a.salu(f's_mov_b32 s{S_P1}, s{S_P3}')
    l_wait_cons('L_lc')
    stamp(VD1, f's{S_STEP}')
    l_issue()
    a.salu(f's_mov_b32 s{S_P3}, s{S_P2q}')
    a.salu(f's_mov_b32 s{S_P2q}, s{S_QM}')
    a.salu(f's_mov_b32 s{S_H2}, s{S_H1}')
    a.salu(f's_mov_b32 s{S_H1}, 0')
    a.salu(f's_cmp_ge_u32 s{S_QM}, s{S_QLIM}')
    a.ctl('s_cbranch_scc1 L_lq')
    a.salu(f's_cmp_lt_u32 s{S_STEP}, s{S_A}')
    a.ctl('s_cbranch_scc1 L_lq')
    a.salu(f's_add_u32 s{S_QK}, s{S_QK}, 1')
    a.salu(f's_cmp_eq_u32 s{S_QK}, {qskip}')
    a.salu(f's_cselect_b32 s{S_QK}, 0, s{S_QK}')
    a.ctl('s_cbranch_scc1 L_lq')
    ql_free(False)
    a.ctl('s_cbranch_scc0 L_lq')
    side_issue()
    a.salu(f's_mov_b32 s{S_H1}, 1')
    a.label('L_lq')
    a.salu(f's_add_u32 s{S_STEP}, s{S_STEP}, 1')
    a.salu(f's_cmp_lt_u32 s{S_STEP}, s{S_END}')
    a.ctl('s_cbranch_scc1 L_lit')
    a.salu(f's_cmp_lg_u32 s{S_G}, 0')
    a.ctl('s_cbranch_scc1 L_lside')
    a.salu(f's_cmp_eq_u32 s{S_H1}, 0')
    a.ctl('s_cbranch_scc0 L_lt_a')
    a.wait(vm=16)
    a.label('L_lt_a')
    a.wait(vm=34)
    l_publish(None, 'L_lt0')
    a.salu(f's_add_u32 s{S_STEP}, s{S_STEP}, 1')
    a.salu(f's_cmp_eq_u32 s{S_H1}, 0')
    a.ctl('s_cbranch_scc0 L_lt_c')
    a.wait(vm=0)
    a.label('L_lt_c')
    a.wait(vm=18)
    l_publish(None, 'L_lt1')
    a.label('L_lside')
    a.salu(f's_cmp_eq_u32 s{S_P1}, s{S_QLIM}')
    a.ctl('s_cbranch_scc1 L_lqd')
    a.label('L_lqf')
    a.wait(vm=0)
    ql_publish(S_QM)
    a.salu(f's_cmp_ge_u32 s{S_QM}, s{S_QLIM}')
    a.ctl('s_cbranch_scc1 L_lqd')
    wd()
    ql_free(True)
    a.ctl('s_cbranch_scc0 L_lqf')
    side_issue()
    a.ctl('s_branch L_lqf')
    a.label('L_lqd')
    a.salu(f's_cmp_eq_u32 s{S_G}, 0')
    a.ctl('s_cbranch_scc1 L_prole')
    lane0_addr(V_HA, F_LAND)
    a.ctl('s_branch L_yswitch')

    a.label('L_n_done')
    a.lq = []
    a.wait(lgkm=0)
    a.ctl('s_nop 7')
    for f in sm(0, 'ndrain'): f()
    for m in pv(0): m()
    stamp(VD2, 26)
    a.ctl('s_nop 7')
    epilogue((0,), True)
    stamp(VD2, 27)
    lane0_addr(V_HA, None)
    a.ctl('s_branch L_yswitch')
    a.label('L_b_pub')
    a.salu(f's_mov_b32 s{S_CUR}, 1')
    a.ctl('s_branch L_prole2')

    a.label('L_qb')
    a.ctl(f's_setprio {pq}')
    def wreads(e, b): return [lambda nu=nu, rd=rd: a.ds_read('ds_read_b64_tr_b16', QWF2[b]+4*nu+2*rd, 2, QWA+nu, e*QST + rd*1024) for nu in range(4) for rd in range(2)]
    def xread(e, t): return lambda: a.ds_read('ds_read_b128', QXF+4*t, 4, QXA, e*QST + t*1024)
    nh = [0]
    def q_need():
        nh[0] += 1
        lab = f'L_qh{nh[0]}'
        a.valu(f'v_cmp_le_u32 vcc, v{QV}, v{QF}')
        a.ctl(f's_cbranch_vccnz {lab}_ok')
        a.label(lab)
        wd()
        a.ctl('s_sleep 2')
        a.ds_read('ds_read_b32', QF, 1, QLA, 0)
        a.wait(lgkm=0)
        a.valu(f'v_cmp_le_u32 vcc, v{QV}, v{QF}')
        a.ctl(f's_cbranch_vccz {lab}')
        a.label(f'{lab}_ok')
    a.lq = []
    q_need()
    for f in wreads(0, 0): f()
    for t in range(9): xread(0, t)()
    a.label('L_qbloop')
    for u in range(4):
        e, b = u, u % 2
        a.wait(lgkm=0)
        a.ds_write('ds_write_b32', QCO, QV, 1, 0)
        a.valu(f'v_add_u32 v{QV}, 1, v{QV}')
        a.valu(f'v_min_u32 v{QV}, 18, v{QV}')
        q_need()
        M = [lambda t=t, nu=nu: a.mfma(QACC+(t*4+nu)*4, QWF2[b]+4*nu, QXF+4*t, QACC+(t*4+nu)*4) for t in range(9) for nu in range(4)]
        gaps = [[] for _ in M]
        for t in range(9): gaps[4*t+3].append(xread((e+1) % 4, t))
        for k, f in enumerate(wreads((e+1) % 4, b ^ 1)): gaps[4*k+1].append(f)
        gaps[33].append(lambda: a.ds_read('ds_read_b32', QF, 1, QLA, 0))
        gaps[30].append(lambda: a.salu(f's_add_u32 s{S_STEP}, s{S_STEP}, 1'))
        gaps[31].append(lambda: a.salu(f's_cmp_eq_u32 s{S_STEP}, 18'))
        run(M, gaps)
        if u == 1: a.ctl('s_cbranch_scc1 L_qbend')
    a.ctl('s_branch L_qbloop')
    a.label('L_qbend')
    stamp(VD2, 17)
    a.lq = []
    a.wait(lgkm=0)
    vconst(QV, 19)
    a.ds_write('ds_write_b32', QCO, QV, 1, 0)
    for r in range(72): a.valu(f'v_pk_mul_f32 v[{QACC+2*r}:{QACC+2*r+1}], v[{QACC+2*r}:{QACC+2*r+1}], s[{S_C}:{S_C+1}]')
    for r in range(72): a.valu(f'v_cvt_pk_bf16_f32 v{QACC+r}, v{QACC+2*r}, v{QACC+2*r+1}')
    a.salu(f's_lshl_b32 s{S_T0}, s{S_W4}, 2')
    a.salu(f's_xor_b32 s{S_T0}, s{S_T0}, 4')
    a.salu(f's_add_u32 s{S_T0}, s{S_T0}, {F_QC - 8}')
    a.valu(f'v_mov_b32 v{QLA}, s{S_T0}')
    vconst(QF, 0)
    q_need()
    a.valu(f'v_lshrrev_b32 v{T}, 1, v3')
    a.valu(f'v_lshl_add_u32 v{T}, v{T}, 4, v2')
    a.valu(f'v_lshlrev_b32 v{T}, 4, v{T}')
    a.valu(f'v_and_b32 v{T+1}, 1, v3')
    a.valu(f'v_lshl_add_u32 v{T}, v{T+1}, 3, v{T}')
    a.salu(f's_sub_u32 s{S_T0}, s{S_W4}, 2')
    a.salu(f's_mul_i32 s{S_T0}, s{S_T0}, {QA[1]-QA[0]}')
    a.salu(f's_add_u32 s{S_T0}, s{S_T0}, {QA[0]}')
    a.valu(f'v_add_u32 v{T}, s{S_T0}, v{T}')
    for t in range(9):
        for nu in range(4):
            a.ds_write('ds_write_b64', T, QACC + (t*4+nu)*2, 2, (t*2 + (nu >> 1))*1024 + (nu & 1)*512)
    a.wait(lgkm=0)
    lds_add1(F_QB)
    stamp(VD2, 12)
    a.salu(f's_cmp_lg_u32 s{S_W4}, 2')
    a.ctl('s_cbranch_scc1 L_notag')
    a.salu('s_or_b32 s74, s74, 1')
    a.valu(f'v_mov_b32 v{T}, s74'); vconst(T+1, 0); vconst(T+2, 0); vconst(T+3, F_TAG)
    a.salu('s_mov_b64 exec, 1')
    a.vmem(f'buffer_atomic_cmpswap v[{T}:{T+1}], v{T+2}, s[{S_DBG}:{S_DBG+3}], 0 offen sc0 sc1')
    a.wait(vm=0)
    a.valu(f'v_readfirstlane_b32 s{S_T0}, v{T}')
    a.salu(f's_cmp_eq_u32 s{S_T0}, 0')
    a.salu(f's_cselect_b32 s{S_T0}, s74, s{S_T0}')
    a.valu(f'v_mov_b32 v{T+2}, s{S_T0}')
    a.ds_write('ds_write_b32', T+3, T+2, 1, 0)
    a.salu('s_mov_b64 exec, -1')
    a.label('L_notag')
    lane0_addr(V_HA, None)
    a.ctl('s_branch L_yswitch')

    for (tag, t) in stubs:
        a.label(f'L_stub{tag}')
        a.ctl(f's_call_b64 s[{S_RET}:{S_RET+1}], L_rare{t}')
        a.ctl(f's_branch L_back{tag}')
    for t in range(2):
        a.label(f'L_rare{t}')
        mx = V_MX[t]; t1, t2 = V_R
        a.ctl('s_nop 7')
        a.valu(f'v_mov_b32 v{t1}, v{mx}')
        a.valu(f'v_permlane32_swap_b32 v{mx}, v{t1}')
        a.valu(f'v_max_f32 v{mx}, v{mx}, v{t1}')
        a.valu(f'v_mov_b32 v{t1}, v{mx}')
        a.valu(f'v_permlane16_swap_b32 v{mx}, v{t1}')
        a.valu(f'v_max_f32 v{mx}, v{mx}, v{t1}')
        a.valu(f'v_max_f32 v{mx}, s{S_FL[t]}, v{mx}')
        a.valu(f'v_max_f32 v{t2}, 0, v{mx}')
        a.valu(f'v_exp_f32 v{t2}, -v{t2}')
        for r in range(4): a.valu(f'v_sub_f32 v{V_NM[t]+r}, v{V_NM[t]+r}, v{mx}')
        for r in range(8): a.valu(f'v_sub_f32 v{V_S[t]+r}, v{V_S[t]+r}, v{mx}')
        for r in range(32): a.valu(f'v_mul_f32 v{V_O[t]+r}, v{V_O[t]+r}, v{t2}')
        for r in range(4): a.valu(f'v_mul_f32 v{V_L[t]+r}, v{V_L[t]+r}, v{t2}')
        a.salu(f's_mov_b32 s{S_TH[t]}, 0x41000000')
        a.salu(f's_mov_b32 s{S_FL[t]}, 0')
        a.ctl(f's_setpc_b64 s[{S_RET}:{S_RET+1}]')

    a.label('L_prole')
    a.salu(f's_mov_b32 s{S_CUR}, 0')
    a.label('L_prole2')
    a.lq = []
    def b_pub(tag):
        a.salu(f's_cmp_eq_u32 s{S_CUR}, 0')
        a.ctl(f's_cbranch_scc1 L_bp{tag}')
        a.wait(vm=0)
        lds_add1(F_OB, rtn=T+3)
        a.valu(f'v_readfirstlane_b32 s{S_T0}, v{T+3}')
        a.salu(f's_cmp_lg_u32 s{S_T0}, 4')
        a.ctl(f's_cbranch_scc1 L_bp{tag}')
        set_flag(1, tag)
        a.label(f'L_bp{tag}')
    if with_p:
        import gen_v12t
        gen_v12t.trole(a, globals(), stamp, vconst, srd, spin_lds, wd, PG, w_flags if pw is None else pw, diag, b_pub, lane0_addr, run, **tkw)
    a.label('L_fin')
    if diag:
        a.wait(vm=0)
        stamp(VD2, 21)
        a.raw('  s_memrealtime s[74:75]')
        a.wait(lgkm=0)
        a.raw(f'  v_writelane_b32 v{VD2}, s74, 31')
        a.raw('  s_getreg_b32 s74, hwreg(HW_REG_HW_ID)')
        a.raw(f'  v_writelane_b32 v{VD2}, s74, 32')
        a.raw('  s_getreg_b32 s74, hwreg(HW_REG_XCC_ID)')
        a.raw(f'  v_writelane_b32 v{VD2}, s74, 33')
        srd(S_DBG, 18, 19, 0x4000000, 0x1000000)
        a.salu(f's_lshl_b32 s72, s2, 3'); a.salu(f's_add_u32 s72, s72, s{S_W}'); a.salu('s_mul_i32 s72, s72, 768')
        a.valu(f'v_lshlrev_b32 v{T}, 2, v0')
        for k, r in enumerate((VD0, VD1, VD2)):
            a.vmem(f'buffer_store_dword v{r}, v{T}, s[{S_DBG}:{S_DBG+3}], s72 offen offset:{k*256}')
    a.label('L_end')
    a.ctl('s_endpgm')

def build(path, k2=False, **kw):
    a = Asm()
    hdr = open('standalone__mha_block_cached__near_ridge.s.ref').read().split('; Override')[0]
    a.raw(hdr.rstrip())
    if k2:
        a.raw(f'; @launch kernel={KNAME} grid=(256,1,1) block=(512,1,1) lds=163840')
        a.raw('; @launch kernel=oproj_kernel grid=(216,1,1) block=(256,1,1) lds=81920')
    else:
        a.raw('; @launch grid=(256,1,1) block=(512,1,1) lds=163840')
    a.raw('.amdgcn_target "amdgcn-amd-amdhsa--gfx950"\n.text')
    kernel(a, **kw)
    if k2:
        import gen_v2a
        a.lq = []; a.eager = 0
        gen_v2a.k2(a)
    txt = a.text().replace('  ; @launch', '; @launch').replace('  ; Kernarg', '; Kernarg').lstrip()
    txt += kd(KNAME, NV)
    if k2: txt += kd('oproj_kernel', 240)
    open(path, 'w').write(txt)
    print(path, 'nops inserted:', a.nnop, 'lines', txt.count('\n'))

if __name__ == '__main__':
    V = dict(a=dict(tkw=dict(pp=0)), b=dict(wot=False, tkw=dict(pp=0)), c=dict(wot=False, wopf=True, tkw=dict(pp=0)))
    for k, kw in V.items():
        build(f'v12{k}.s', **kw)
        build(f'v12{k}_c.s', diag='coarse', **kw)
```
